```python
import torch

def _softmax(x, axis=-1):
    return torch.softmax(x, dim=axis)
def _gelu(x):
    return torch.nn.functional.gelu(x, approximate="tanh")
def _silu(x):
    return torch.nn.functional.silu(x)
def _sigmoid(x):
    return torch.sigmoid(x)
def _layernorm(x, axis=-1, eps=1e-5):
    m = x.mean(dim=axis, keepdim=True)
    v = x.var(dim=axis, keepdim=True, unbiased=False)
    return (x - m) / torch.sqrt(v + eps)
def _scatter_add(tgt, idx, src, axis=0):
    return tgt.clone().index_add_(axis, idx, src)
def _segment_sum(src, seg, n):
    out = torch.zeros((n,) + src.shape[1:], dtype=src.dtype)
    return out.index_add_(0, seg, src)
def _pad(x, pw):
    flat = tuple(v for pair in reversed(pw) for v in pair)
    return torch.nn.functional.pad(x, flat)

kernel_name = 'standalone__gqa_softmax__near_ridge'

def setup_inputs():

    _w = (lambda a: (lambda t: t.to(torch.bfloat16) if t.is_floating_point() else t)(torch.as_tensor(a)))
    B, Hq, Hkv, Sq, Sk, D = 8, 32, 32, 240, 1024, 128
    return {
        "q": _w((lambda *s: torch.randn(*s, dtype=torch.bfloat16) * 0.8)(B, Hq, Sq, D)),
        "k": _w((lambda *s: torch.randn(*s, dtype=torch.bfloat16) * 0.8)(B, Hkv, Sk, D)),
        "v": _w((lambda *s: torch.randn(*s, dtype=torch.bfloat16) * 0.05)(B, Hkv, Sk, D)),
    }

def reference(q, k, v):
    B, Hq, Sq, D = q.shape
    Hkv = k.shape[1]
    rep = Hq // Hkv
    k = (lambda x, n, axis: torch.repeat_interleave(x, n, dim=axis))(k, rep, axis=1)
    v = (lambda x, n, axis: torch.repeat_interleave(x, n, dim=axis))(v, rep, axis=1)
    scale = D ** -0.5
    scores = torch.einsum("bhqd,bhkd->bhqk", q, k) * scale
    p = _softmax(scores, axis=-1)
    return torch.einsum("bhqk,bhkd->bhqd", p, v)
```

```python
import math

KNAME = "standalone__gqa_softmax__near_ridge_kernel"
OUT = "standalone__gqa_softmax__near_ridge.s"

L = []
def e(s):
    L.append("    " + s)
def lab(s):
    L.append(s + ":")
def cmt(s):
    L.append("    ; " + s)

vM, vL, vA, vT0, vT1, vT2, vT3 = 1, 2, 3, 4, 5, 6, 7
Q0 = 8
O0 = 40
S0 = 104
P0 = 136
F0 = 152
vKd0, vKd1, vVd = 216, 217, 218
vKb, vVb = 219, 220
KA0 = 221
VA0 = 229
vOff = 233
vL2 = 234
NVGPR = 236

sQ, sK, sV, sO = 4, 8, 12, 16
sT, sGoff, sBuf, sDbuf, sC, sW, sTmp, sKw, sVw = 20, 21, 22, 23, 24, 25, 26, 27, 28

NT = 16
TILE = 32768
C_SCALE = math.log2(math.e) / math.sqrt(128.0)
import struct
C_BITS = struct.unpack("<I", struct.pack("<f", C_SCALE))[0]


def vr(b, n):
    return f"v[{b}:{b+n-1}]"


def dma_issue():
    e(f"s_add_u32 m0, s{sDbuf}, s{sKw}")
    e("s_nop 0")
    e(f"buffer_load_dwordx4 v{vKd0}, s[{sK}:{sK+3}], s{sGoff} offen lds")
    e(f"buffer_load_dwordx4 v{vKd1}, s[{sK}:{sK+3}], s{sGoff} offen offset:1024 lds")
    e(f"s_add_u32 m0, s{sDbuf}, s{sVw}")
    e("s_nop 0")
    e(f"buffer_load_dwordx4 v{vVd}, s[{sV}:{sV+3}], s{sGoff} offen lds")
    e(f"buffer_load_dwordx4 v{vVd}, s[{sV}:{sV+3}], s{sGoff} offen offset:1024 lds")
    e(f"s_add_u32 s{sGoff}, s{sGoff}, 16384")
    e(f"s_add_u32 s{sDbuf}, s{sDbuf}, {TILE}")
    e(f"s_cmp_ge_u32 s{sDbuf}, {3*TILE}")
    e(f"s_cselect_b32 s{sDbuf}, 0, s{sDbuf}")


def tile_body(wait_vm, dma):
    e(f"s_waitcnt vmcnt({wait_vm})")
    e("s_barrier")
    if dma:
        dma_issue()
    e(f"v_add_u32 v{KA0}, s{sBuf}, v{vKb}")
    e(f"v_add_u32 v{VA0}, s{sBuf}, v{vVb}")
    for kk in range(1, 8):
        e(f"v_xor_b32 v{KA0+kk}, {kk*32}, v{KA0}")
    for d in range(1, 4):
        e(f"v_xor_b32 v{VA0+d}, {d*64}, v{VA0}")
    for kb in range(2):
        for kk in range(8):
            e(f"ds_read_b128 {vr(F0+(kb*8+kk)*4,4)}, v{KA0+kk} offset:{kb*8192}")
    for kb in range(2):
        for kk in range(8):
            idx = kb * 8 + kk
            e(f"s_waitcnt lgkmcnt({15-idx})")
            c = "0" if kk == 0 else vr(S0 + kb * 16, 16)
            e(f"v_mfma_f32_32x32x16_bf16 {vr(S0+kb*16,16)}, {vr(F0+idx*4,4)}, {vr(Q0+kk*4,4)}, {c}")
    for m in range(4):
        for d in range(4):
            for jj in range(2):
                r = F0 + ((m * 4 + d) * 2 + jj) * 2
                e(f"ds_read_b64_tr_b16 {vr(r,2)}, v{VA0+d} offset:{16384 + (16*m+8*jj)*256}")
    e(f"v_max3_f32 v{vT0}, v{S0}, v{S0+1}, v{vM}")
    e(f"v_max_f32 v{vT1}, v{S0+2}, v{S0+3}")
    for i in range(4, 32, 4):
        e(f"v_max3_f32 v{vT0}, v{S0+i}, v{S0+i+1}, v{vT0}")
        e(f"v_max3_f32 v{vT1}, v{S0+i+2}, v{S0+i+3}, v{vT1}")
    e(f"v_max_f32 v{vT0}, v{vT0}, v{vT1}")
    e(f"v_mov_b32 v{vT1}, v{vT0}")
    e("s_nop 1")
    e(f"v_permlane32_swap_b32 v{vT0}, v{vT1}")
    e(f"v_max_f32 v{vT0}, v{vT0}, v{vT1}")
    e(f"v_sub_f32 v{vT1}, v{vM}, v{vT0}")
    e(f"v_mul_f32 v{vT1}, s{sC}, v{vT1}")
    e(f"v_exp_f32 v{vA}, v{vT1}")
    e(f"v_mul_f32 v{vT2}, s{sC}, v{vT0}")
    e(f"v_mov_b32 v{vM}, v{vT0}")
    for i in range(32):
        e(f"v_fma_f32 v{S0+i}, v{S0+i}, s{sC}, -v{vT2}")
    for i in range(32):
        e(f"v_exp_f32 v{S0+i}, v{S0+i}")
    e(f"v_mul_f32 v{vL}, v{vL}, v{vA}")
    e(f"v_mul_f32 v{vL2}, v{vL2}, v{vA}")
    for i in range(0, 32, 2):
        e(f"v_add_f32 v{vL}, v{vL}, v{S0+i}")
        e(f"v_add_f32 v{vL2}, v{vL2}, v{S0+i+1}")
    for m in range(4):
        for jp in range(4):
            s = S0 + (m >> 1) * 16 + (m & 1) * 8 + jp * 2
            e(f"v_cvt_pk_bf16_f32 v{P0+m*4+jp}, v{s}, v{s+1}")
    for i in range(64):
        e(f"v_mul_f32 v{O0+i}, v{O0+i}, v{vA}")
    e("s_nop 1")
    for m in range(4):
        for d in range(4):
            idx = m * 4 + d
            rem = 32 - 2 * (idx + 1)
            e(f"s_waitcnt lgkmcnt({min(15, rem)})")
            e(f"v_mfma_f32_32x32x16_bf16 {vr(O0+d*16,16)}, {vr(F0+idx*4,4)}, {vr(P0+m*4,4)}, {vr(O0+d*16,16)}")
    e(f"s_add_u32 s{sBuf}, s{sBuf}, {TILE}")
    e(f"s_cmp_ge_u32 s{sBuf}, {3*TILE}")
    e(f"s_cselect_b32 s{sBuf}, 0, s{sBuf}")


def main():
    hdr = open(OUT + ".ref").read().split("; @launch")[0]
    L.append(hdr.rstrip("\n"))
    L.append(f"; @launch grid=(256,1,1) block=(512,1,1) lds={3*TILE}")
    L.append('.amdgcn_target "amdgcn-amd-amdhsa--gfx950"')
    L.append(".text")
    L.append(f".globl {KNAME}")
    L.append(".p2align 8")
    L.append(f".type {KNAME},@function")
    lab(KNAME)
    e("s_cmp_ge_u32 s2, 256")
    e("s_cbranch_scc1 L_end")
    e("s_load_dwordx4 s[32:35], s[0:1], 0")
    e("s_load_dwordx4 s[36:39], s[0:1], 16")
    e(f"v_lshrrev_b32 v{vT0}, 6, v0")
    e("s_nop 0")
    e(f"v_readfirstlane_b32 s{sW}, v{vT0}")
    e(f"v_and_b32 v0, 63, v0")
    e(f"s_mul_i32 s{sTmp}, s2, 61440")
    e("s_lshl_b32 s31, s2, 18")
    e("s_waitcnt lgkmcnt(0)")
    for (srd, src, off) in ((sQ, 32, sTmp), (sK, 34, 31), (sV, 36, 31), (sO, 38, sTmp)):
        e(f"s_add_u32 s{srd}, s{src}, s{off}")
        e(f"s_addc_u32 s{srd+1}, s{src+1}, 0")
        e(f"s_mov_b32 s{srd+2}, {61440 if off == sTmp else 262144}")
        e(f"s_mov_b32 s{srd+3}, 0x00020000")
    e(f"s_mov_b32 s{sC}, 0x{C_BITS:08x}")
    e(f"v_and_b32 v{vT0}, 31, v0")
    e(f"v_lshrrev_b32 v{vT1}, 5, v0")
    e(f"s_lshl_b32 s{sTmp}, s{sW}, 13")
    e(f"v_lshlrev_b32 v{vT2}, 8, v{vT0}")
    e(f"v_add_u32 v{vT2}, s{sTmp}, v{vT2}")
    e(f"v_lshl_add_u32 v{vT3}, v{vT1}, 4, v{vT2}")
    e(f"v_lshl_add_u32 v{vOff}, v{vT1}, 3, v{vT2}")
    for kk in range(8):
        e(f"buffer_load_dwordx4 {vr(Q0+kk*4,4)}, v{vT3}, s[{sQ}:{sQ+3}], 0 offen offset:{kk*32}")
    e(f"v_and_b32 v{vT2}, 15, v{vT0}")
    e(f"v_xor_b32 v{vT2}, v{vT1}, v{vT2}")
    e(f"v_lshlrev_b32 v{vT2}, 4, v{vT2}")
    e(f"v_lshl_add_u32 v{vKb}, v{vT0}, 8, v{vT2}")
    e(f"v_and_b32 v{vT0}, 15, v0")
    e(f"v_lshrrev_b32 v{vT2}, 2, v{vT0}")
    e(f"v_and_b32 v{vT0}, 3, v{vT0}")
    e(f"v_lshlrev_b32 v{vT0}, 3, v{vT0}")
    e(f"v_lshl_add_u32 v{vT0}, v{vT2}, 6, v{vT0}")
    e(f"v_lshl_add_u32 v{vT0}, v{vT2}, 8, v{vT0}")
    e(f"v_lshl_add_u32 v{vT0}, v{vT1}, 10, v{vT0}")
    e(f"v_bfe_u32 v{vT2}, v0, 4, 1")
    e(f"v_lshl_add_u32 v{vVb}, v{vT2}, 5, v{vT0}")
    e(f"v_lshrrev_b32 v{vT0}, 4, v0")
    e(f"v_and_b32 v{vT1}, 15, v0")
    e(f"s_lshl_b32 s{sTmp}, s{sW}, 3")
    e(f"v_add_u32 v{vT2}, s{sTmp}, v{vT0}")
    e(f"v_and_b32 v{vT3}, 15, v{vT2}")
    e(f"v_xor_b32 v{vT3}, v{vT3}, v{vT1}")
    e(f"v_lshlrev_b32 v{vT3}, 4, v{vT3}")
    e(f"v_lshl_add_u32 v{vKd0}, v{vT2}, 8, v{vT3}")
    e(f"v_add_u32 v{vT3}, 4, v{vT2}")
    e(f"v_and_b32 v{vT3}, 15, v{vT3}")
    e(f"v_xor_b32 v{vT3}, v{vT3}, v{vT1}")
    e(f"v_lshlrev_b32 v{vT3}, 4, v{vT3}")
    e(f"v_lshl_add_u32 v{vKd1}, v{vT2}, 8, v{vT3}")
    e(f"v_lshlrev_b32 v{vT3}, 2, v{vT0}")
    e(f"v_xor_b32 v{vT3}, v{vT3}, v{vT1}")
    e(f"v_lshlrev_b32 v{vT3}, 4, v{vT3}")
    e(f"v_lshl_add_u32 v{vVd}, v{vT2}, 8, v{vT3}")
    e(f"s_lshl_b32 s{sKw}, s{sW}, 11")
    e(f"s_add_u32 s{sVw}, s{sKw}, 16384")
    e(f"s_mov_b32 s{sGoff}, 0")
    e(f"s_mov_b32 s{sDbuf}, 0")
    e(f"s_mov_b32 s{sBuf}, 0")
    dma_issue()
    dma_issue()
    e(f"v_mov_b32 v{vM}, 0xff800000")
    e(f"v_mov_b32 v{vL}, 0")
    e(f"v_mov_b32 v{vL2}, 0")
    for i in range(64):
        e(f"v_mov_b32 v{O0+i}, 0")
    e(f"s_mov_b32 s{sT}, 0")
    lab("L_loop")
    tile_body(4, True)
    e(f"s_add_u32 s{sT}, s{sT}, 1")
    e(f"s_cmp_lt_u32 s{sT}, {NT-2}")
    e("s_cbranch_scc1 L_loop")
    tile_body(4, False)
    tile_body(0, False)
    e(f"v_add_f32 v{vL}, v{vL}, v{vL2}")
    e(f"v_mov_b32 v{vT0}, v{vL}")
    e("s_nop 1")
    e(f"v_permlane32_swap_b32 v{vL}, v{vT0}")
    e(f"v_add_f32 v{vL}, v{vL}, v{vT0}")
    e(f"v_rcp_f32 v{vL}, v{vL}")
    e("s_nop 15")
    e("s_nop 7")
    for i in range(64):
        e(f"v_mul_f32 v{O0+i}, v{O0+i}, v{vL}")
    for b in range(4):
        for rq in range(4):
            o = O0 + b * 16 + rq * 4
            t = S0 + (b * 4 + rq) * 2
            e(f"v_cvt_pk_bf16_f32 v{t}, v{o}, v{o+1}")
            e(f"v_cvt_pk_bf16_f32 v{t+1}, v{o+2}, v{o+3}")
    for b in range(4):
        for rq in range(4):
            t = S0 + (b * 4 + rq) * 2
            e(f"buffer_store_dwordx2 {vr(t,2)}, v{vOff}, s[{sO}:{sO+3}], 0 offen offset:{b*64+rq*16}")
    lab("L_end")
    L.append("s_endpgm")
    L.append('.section .rodata,"a"')
    L.append(".p2align 6")
    L.append(f".amdhsa_kernel {KNAME}")
    L.append(f"  .amdhsa_next_free_vgpr {NVGPR}")
    L.append("  .amdhsa_next_free_sgpr 48")
    L.append(f"  .amdhsa_accum_offset {(NVGPR+3)//4*4}")
    L.append("  .amdhsa_group_segment_fixed_size 0")
    L.append("  .amdhsa_kernarg_size 48")
    L.append("  .amdhsa_user_sgpr_count 2")
    L.append("  .amdhsa_user_sgpr_kernarg_segment_ptr 1")
    L.append("  .amdhsa_system_sgpr_workgroup_id_x 1")
    L.append(".end_amdhsa_kernel")
    open(OUT, "w").write("\n".join(L) + "\n")


main()
```

```python
import math

KNAME = "standalone__gqa_softmax__near_ridge_kernel"
OUT = "standalone__gqa_softmax__near_ridge.s"

L = []
def e(s):
    L.append("    " + s)
def lab(s):
    L.append(s + ":")
def cmt(s):
    L.append("    ; " + s)

vM, vL, vA, vT0, vT1, vT2, vT3 = 1, 2, 3, 4, 5, 6, 7
Q0 = 8
O0 = 40
S0 = 104
P0 = 136
F0 = 152
vKd0, vKd1, vVd = 216, 217, 218
vKb, vVb = 219, 220
KA0 = 221
VA0 = 229
vOff = 233
vL2 = 234
NVGPR = 236

sQ, sK, sV, sO = 4, 8, 12, 16
sT, sGoff, sBuf, sDbuf, sC, sW, sTmp, sKw, sVw, sPrev = 20, 21, 22, 23, 24, 25, 26, 27, 28, 29

NT = 16
NSLOT = 4
TILE = 32768
C_SCALE = math.log2(math.e) / math.sqrt(128.0)
import struct
C_BITS = struct.unpack("<I", struct.pack("<f", C_SCALE))[0]


def vr(b, n):
    return f"v[{b}:{b+n-1}]"


def dma_issue():
    e(f"s_add_u32 m0, s{sDbuf}, s{sKw}")
    e("s_nop 0")
    e(f"buffer_load_dwordx4 v{vKd0}, s[{sK}:{sK+3}], s{sGoff} offen lds")
    e(f"buffer_load_dwordx4 v{vKd1}, s[{sK}:{sK+3}], s{sGoff} offen offset:1024 lds")
    e(f"s_add_u32 m0, s{sDbuf}, s{sVw}")
    e("s_nop 0")
    e(f"buffer_load_dwordx4 v{vVd}, s[{sV}:{sV+3}], s{sGoff} offen lds")
    e(f"buffer_load_dwordx4 v{vVd}, s[{sV}:{sV+3}], s{sGoff} offen offset:1024 lds")
    e(f"s_add_u32 s{sGoff}, s{sGoff}, 16384")
    e(f"s_add_u32 s{sDbuf}, s{sDbuf}, {TILE}")
    e(f"s_cmp_ge_u32 s{sDbuf}, {NSLOT*TILE}")
    e(f"s_cselect_b32 s{sDbuf}, 0, s{sDbuf}")


def qk():
    e(f"v_add_u32 v{KA0}, s{sBuf}, v{vKb}")
    for kk in range(1, 8):
        e(f"v_xor_b32 v{KA0+kk}, {kk*32}, v{KA0}")
    for kb in range(2):
        for kk in range(8):
            e(f"ds_read_b128 {vr(F0+(kb*8+kk)*4,4)}, v{KA0+kk} offset:{kb*8192}")
    for kb in range(2):
        for kk in range(8):
            idx = kb * 8 + kk
            e(f"s_waitcnt lgkmcnt({15-idx})")
            c = "0" if kk == 0 else vr(S0 + kb * 16, 16)
            e(f"v_mfma_f32_32x32x16_bf16 {vr(S0+kb*16,16)}, {vr(F0+idx*4,4)}, {vr(Q0+kk*4,4)}, {c}")


def vreads(sb):
    e(f"v_add_u32 v{VA0}, s{sb}, v{vVb}")
    for d in range(1, 4):
        e(f"v_xor_b32 v{VA0+d}, {d*64}, v{VA0}")
    for m in range(4):
        for d in range(4):
            for jj in range(2):
                r = F0 + ((m * 4 + d) * 2 + jj) * 2
                e(f"ds_read_b64_tr_b16 {vr(r,2)}, v{VA0+d} offset:{16384 + (16*m+8*jj)*256}")


def pv():
    for m in range(4):
        for d in range(4):
            idx = m * 4 + d
            rem = 32 - 2 * (idx + 1)
            e(f"s_waitcnt lgkmcnt({min(15, rem)})")
            e(f"v_mfma_f32_32x32x16_bf16 {vr(O0+d*16,16)}, {vr(F0+idx*4,4)}, {vr(P0+m*4,4)}, {vr(O0+d*16,16)}")


def tile_body(wait_vm, dma, late=False, first=False):
    e(f"s_waitcnt vmcnt({wait_vm})")
    e("s_barrier")
    if dma:
        dma_issue()
    if late:
        if not first:
            vreads(sPrev)
            pv()
        qk()
        e("s_nop 15")
        softmax()
    else:
        qk()
        vreads(sBuf)
        softmax()
        pv()
    e(f"s_mov_b32 s{sPrev}, s{sBuf}")
    e(f"s_add_u32 s{sBuf}, s{sBuf}, {TILE}")
    e(f"s_cmp_ge_u32 s{sBuf}, {NSLOT*TILE}")
    e(f"s_cselect_b32 s{sBuf}, 0, s{sBuf}")


def softmax():
    e(f"v_max3_f32 v{vT0}, v{S0}, v{S0+1}, v{vM}")
    e(f"v_max_f32 v{vT1}, v{S0+2}, v{S0+3}")
    for i in range(4, 32, 4):
        e(f"v_max3_f32 v{vT0}, v{S0+i}, v{S0+i+1}, v{vT0}")
        e(f"v_max3_f32 v{vT1}, v{S0+i+2}, v{S0+i+3}, v{vT1}")
    e(f"v_max_f32 v{vT0}, v{vT0}, v{vT1}")
    e(f"v_mov_b32 v{vT1}, v{vT0}")
    e("s_nop 1")
    e(f"v_permlane32_swap_b32 v{vT0}, v{vT1}")
    e(f"v_max_f32 v{vT0}, v{vT0}, v{vT1}")
    e(f"v_sub_f32 v{vT1}, v{vM}, v{vT0}")
    e(f"v_mul_f32 v{vT1}, s{sC}, v{vT1}")
    e(f"v_exp_f32 v{vA}, v{vT1}")
    e(f"v_mul_f32 v{vT2}, s{sC}, v{vT0}")
    e(f"v_mov_b32 v{vM}, v{vT0}")
    for i in range(32):
        e(f"v_fma_f32 v{S0+i}, v{S0+i}, s{sC}, -v{vT2}")
    for i in range(32):
        e(f"v_exp_f32 v{S0+i}, v{S0+i}")
    e(f"v_mul_f32 v{vL}, v{vL}, v{vA}")
    e(f"v_mul_f32 v{vL2}, v{vL2}, v{vA}")
    for i in range(0, 32, 2):
        e(f"v_add_f32 v{vL}, v{vL}, v{S0+i}")
        e(f"v_add_f32 v{vL2}, v{vL2}, v{S0+i+1}")
    for m in range(4):
        for jp in range(4):
            s = S0 + (m >> 1) * 16 + (m & 1) * 8 + jp * 2
            e(f"v_cvt_pk_bf16_f32 v{P0+m*4+jp}, v{s}, v{s+1}")
    for i in range(64):
        e(f"v_mul_f32 v{O0+i}, v{O0+i}, v{vA}")
    e("s_nop 1")


def main():
    hdr = open(OUT + ".ref").read().split("; @launch")[0]
    L.append(hdr.rstrip("\n"))
    L.append(f"; @launch grid=(256,1,1) block=(512,1,1) lds={NSLOT*TILE}")
    L.append('.amdgcn_target "amdgcn-amd-amdhsa--gfx950"')
    L.append(".text")
    L.append(f".globl {KNAME}")
    L.append(".p2align 8")
    L.append(f".type {KNAME},@function")
    lab(KNAME)
    e("s_cmp_ge_u32 s2, 256")
    e("s_cbranch_scc1 L_end")
    e("s_load_dwordx4 s[32:35], s[0:1], 0")
    e("s_load_dwordx4 s[36:39], s[0:1], 16")
    e(f"v_lshrrev_b32 v{vT0}, 6, v0")
    e("s_nop 0")
    e(f"v_readfirstlane_b32 s{sW}, v{vT0}")
    e(f"v_and_b32 v0, 63, v0")
    e(f"s_mul_i32 s{sTmp}, s2, 61440")
    e("s_lshl_b32 s31, s2, 18")
    e("s_waitcnt lgkmcnt(0)")
    for (srd, src, off) in ((sQ, 32, sTmp), (sK, 34, 31), (sV, 36, 31), (sO, 38, sTmp)):
        e(f"s_add_u32 s{srd}, s{src}, s{off}")
        e(f"s_addc_u32 s{srd+1}, s{src+1}, 0")
        e(f"s_mov_b32 s{srd+2}, {61440 if off == sTmp else 262144}")
        e(f"s_mov_b32 s{srd+3}, 0x00020000")
    e(f"s_mov_b32 s{sC}, 0x{C_BITS:08x}")
    e(f"v_and_b32 v{vT0}, 31, v0")
    e(f"v_lshrrev_b32 v{vT1}, 5, v0")
    e(f"s_lshl_b32 s{sTmp}, s{sW}, 13")
    e(f"v_lshlrev_b32 v{vT2}, 8, v{vT0}")
    e(f"v_add_u32 v{vT2}, s{sTmp}, v{vT2}")
    e(f"v_lshl_add_u32 v{vT3}, v{vT1}, 4, v{vT2}")
    e(f"v_lshl_add_u32 v{vOff}, v{vT1}, 3, v{vT2}")
    for kk in range(8):
        e(f"buffer_load_dwordx4 {vr(Q0+kk*4,4)}, v{vT3}, s[{sQ}:{sQ+3}], 0 offen offset:{kk*32}")
    e(f"v_and_b32 v{vT2}, 15, v{vT0}")
    e(f"v_xor_b32 v{vT2}, v{vT1}, v{vT2}")
    e(f"v_lshlrev_b32 v{vT2}, 4, v{vT2}")
    e(f"v_lshl_add_u32 v{vKb}, v{vT0}, 8, v{vT2}")
    e(f"v_and_b32 v{vT0}, 15, v0")
    e(f"v_lshrrev_b32 v{vT2}, 2, v{vT0}")
    e(f"v_and_b32 v{vT0}, 3, v{vT0}")
    e(f"v_lshlrev_b32 v{vT0}, 3, v{vT0}")
    e(f"v_lshl_add_u32 v{vT0}, v{vT2}, 6, v{vT0}")
    e(f"v_lshl_add_u32 v{vT0}, v{vT2}, 8, v{vT0}")
    e(f"v_lshl_add_u32 v{vT0}, v{vT1}, 10, v{vT0}")
    e(f"v_bfe_u32 v{vT2}, v0, 4, 1")
    e(f"v_lshl_add_u32 v{vVb}, v{vT2}, 5, v{vT0}")
    e(f"v_lshrrev_b32 v{vT0}, 4, v0")
    e(f"v_and_b32 v{vT1}, 15, v0")
    e(f"s_lshl_b32 s{sTmp}, s{sW}, 3")
    e(f"v_add_u32 v{vT2}, s{sTmp}, v{vT0}")
    e(f"v_and_b32 v{vT3}, 15, v{vT2}")
    e(f"v_xor_b32 v{vT3}, v{vT3}, v{vT1}")
    e(f"v_lshlrev_b32 v{vT3}, 4, v{vT3}")
    e(f"v_lshl_add_u32 v{vKd0}, v{vT2}, 8, v{vT3}")
    e(f"v_add_u32 v{vT3}, 4, v{vT2}")
    e(f"v_and_b32 v{vT3}, 15, v{vT3}")
    e(f"v_xor_b32 v{vT3}, v{vT3}, v{vT1}")
    e(f"v_lshlrev_b32 v{vT3}, 4, v{vT3}")
    e(f"v_lshl_add_u32 v{vKd1}, v{vT2}, 8, v{vT3}")
    e(f"v_lshlrev_b32 v{vT3}, 2, v{vT0}")
    e(f"v_xor_b32 v{vT3}, v{vT3}, v{vT1}")
    e(f"v_lshlrev_b32 v{vT3}, 4, v{vT3}")
    e(f"v_lshl_add_u32 v{vVd}, v{vT2}, 8, v{vT3}")
    e(f"s_lshl_b32 s{sKw}, s{sW}, 11")
    e(f"s_add_u32 s{sVw}, s{sKw}, 16384")
    e(f"s_mov_b32 s{sGoff}, 0")
    e(f"s_mov_b32 s{sDbuf}, 0")
    e(f"s_mov_b32 s{sBuf}, 0")
    dma_issue()
    dma_issue()
    e(f"v_mov_b32 v{vM}, 0xff800000")
    e(f"v_mov_b32 v{vL}, 0")
    e(f"v_mov_b32 v{vL2}, 0")
    for i in range(64):
        e(f"v_mov_b32 v{O0+i}, 0")
    e(f"s_mov_b32 s{sT}, 0")
    e(f"s_cmp_ge_u32 s{sW}, 4")
    e("s_cbranch_scc1 L_late")
    lab("L_loop")
    tile_body(4, True)
    e(f"s_add_u32 s{sT}, s{sT}, 1")
    e(f"s_cmp_lt_u32 s{sT}, {NT-2}")
    e("s_cbranch_scc1 L_loop")
    tile_body(4, False)
    tile_body(0, False)
    e("s_branch L_epi")
    lab("L_late")
    tile_body(4, True, late=True, first=True)
    e(f"s_mov_b32 s{sT}, 1")
    lab("L_loop2")
    tile_body(4, True, late=True)
    e(f"s_add_u32 s{sT}, s{sT}, 1")
    e(f"s_cmp_lt_u32 s{sT}, {NT-2}")
    e("s_cbranch_scc1 L_loop2")
    tile_body(4, False, late=True)
    tile_body(0, False, late=True)
    vreads(sPrev)
    pv()
    lab("L_epi")
    e(f"v_add_f32 v{vL}, v{vL}, v{vL2}")
    e(f"v_mov_b32 v{vT0}, v{vL}")
    e("s_nop 1")
    e(f"v_permlane32_swap_b32 v{vL}, v{vT0}")
    e(f"v_add_f32 v{vL}, v{vL}, v{vT0}")
    e(f"v_rcp_f32 v{vL}, v{vL}")
    e("s_nop 15")
    e("s_nop 7")
    for i in range(64):
        e(f"v_mul_f32 v{O0+i}, v{O0+i}, v{vL}")
    for b in range(4):
        for rq in range(4):
            o = O0 + b * 16 + rq * 4
            t = S0 + (b * 4 + rq) * 2
            e(f"v_cvt_pk_bf16_f32 v{t}, v{o}, v{o+1}")
            e(f"v_cvt_pk_bf16_f32 v{t+1}, v{o+2}, v{o+3}")
    for b in range(4):
        for rq in range(4):
            t = S0 + (b * 4 + rq) * 2
            e(f"buffer_store_dwordx2 {vr(t,2)}, v{vOff}, s[{sO}:{sO+3}], 0 offen offset:{b*64+rq*16}")
    lab("L_end")
    L.append("s_endpgm")
    L.append('.section .rodata,"a"')
    L.append(".p2align 6")
    L.append(f".amdhsa_kernel {KNAME}")
    L.append(f"  .amdhsa_next_free_vgpr {NVGPR}")
    L.append("  .amdhsa_next_free_sgpr 48")
    L.append(f"  .amdhsa_accum_offset {(NVGPR+3)//4*4}")
    L.append("  .amdhsa_group_segment_fixed_size 0")
    L.append("  .amdhsa_kernarg_size 48")
    L.append("  .amdhsa_user_sgpr_count 2")
    L.append("  .amdhsa_user_sgpr_kernarg_segment_ptr 1")
    L.append("  .amdhsa_system_sgpr_workgroup_id_x 1")
    L.append(".end_amdhsa_kernel")
    open(OUT, "w").write("\n".join(L) + "\n")


main()
```

```python
import math, os, struct, sys

KNAME = "standalone__gqa_softmax__near_ridge_kernel"
REF = "standalone__gqa_softmax__near_ridge.s"
OUT = sys.argv[1] if len(sys.argv) > 1 else REF
MODE = os.environ.get("MODE", "")

L = []
def e(s): L.append("    " + s)
def lab(s): L.append(s + ":")

vM, vL, vL2, vA, vT0, vT1, vT2 = 1, 2, 3, 4, 5, 6, 7
Q0 = 8
O0 = 40
SA = 104
SB = 136
P0 = 168
F0 = 184
NF = 12
vKd0, vKd1, vVd, vKb, vVb, vOff, vMc = 232, 233, 234, 235, 236, 237, 238
KA0 = 239
VA0 = 247
NVGPR = 251

sQ, sK, sV, sO = 4, 8, 12, 16
sT, sGoff, sKbuf, sVbuf, sDbuf, sC, sW, sTmp, sKw, sVw, sThr = 20, 21, 22, 23, 24, 25, 26, 27, 28, 29, 30
NT, NSLOT, TILE = 16, 4, 32768
C_SCALE = math.log2(math.e) / math.sqrt(128.0)
f2b = lambda x: struct.unpack("<I", struct.pack("<f", x))[0]
THR_RAW = 8.0 / C_SCALE
uid = [0]

def vr(b, n): return f"v[{b}:{b+n-1}]"

def adv(s):
    e(f"s_add_u32 s{s}, s{s}, {TILE}")
    e(f"s_cmp_ge_u32 s{s}, {NSLOT*TILE}")
    e(f"s_cselect_b32 s{s}, 0, s{s}")

def dma_issue():
    if MODE == "nomem":
        return
    e(f"s_add_u32 m0, s{sDbuf}, s{sKw}")
    e("s_nop 0")
    e(f"buffer_load_dwordx4 v{vKd0}, s[{sK}:{sK+3}], s{sGoff} offen lds")
    e(f"buffer_load_dwordx4 v{vKd1}, s[{sK}:{sK+3}], s{sGoff} offen offset:1024 lds")
    e(f"s_add_u32 m0, s{sDbuf}, s{sVw}")
    e("s_nop 0")
    e(f"buffer_load_dwordx4 v{vVd}, s[{sV}:{sV+3}], s{sGoff} offen lds")
    e(f"buffer_load_dwordx4 v{vVd}, s[{sV}:{sV+3}], s{sGoff} offen offset:1024 lds")
    e(f"s_add_u32 s{sGoff}, s{sGoff}, 16384")
    adv(sDbuf)


def stream(do_qk, Snext, do_sm, Scur):
    mf = []
    if do_qk:
        e(f"v_add_u32 v{KA0}, s{sKbuf}, v{vKb}")
        for kk in range(1, 8):
            e(f"v_xor_b32 v{KA0+kk}, {kk*32}, v{KA0}")
        for kk in range(8):
            for kb in range(2):
                loads = [lambda f, kb=kb, kk=kk: f"ds_read_b128 {vr(f,4)}, v{KA0+kk} offset:{kb*8192}"]
                c = "0" if kk == 0 else vr(Snext + kb * 16, 16)
                mm = lambda f, kb=kb, kk=kk, c=c: f"v_mfma_f32_32x32x16_bf16 {vr(Snext+kb*16,16)}, {vr(f,4)}, {vr(Q0+kk*4,4)}, {c}"
                mf.append((loads, mm, None))
    if do_sm:
        e(f"v_add_u32 v{VA0}, s{sVbuf}, v{vVb}")
        for d in range(1, 4):
            e(f"v_xor_b32 v{VA0+d}, {d*64}, v{VA0}")
        for m in range(4):
            for d in range(4):
                loads = [lambda f, m=m, d=d, jj=jj: f"ds_read_b64_tr_b16 {vr(f+2*jj,2)}, v{VA0+d} offset:{16384+(16*m+8*jj)*256}" for jj in range(2)]
                mm = lambda f, m=m, d=d: f"v_mfma_f32_32x32x16_bf16 {vr(O0+d*16,16)}, {vr(f,4)}, {vr(P0+m*4,4)}, {vr(O0+d*16,16)}"
                mf.append((loads, mm, m))
    W = []
    if do_sm:
        u = uid[0]; uid[0] += 1
        S = Scur
        W.append((f"v_max3_f32 v{vT0}, v{S}, v{S+1}, v{S+2}", 1, None))
        W.append((f"v_max3_f32 v{vT1}, v{S+3}, v{S+4}, v{S+5}", 1, None))
        for i in range(6, 30, 4):
            W.append((f"v_max3_f32 v{vT0}, v{S+i}, v{S+i+1}, v{vT0}", 1, None))
            W.append((f"v_max3_f32 v{vT1}, v{S+i+2}, v{S+i+3}, v{vT1}", 1, None))
        W.append((f"v_max3_f32 v{vT0}, v{S+30}, v{S+31}, v{vT0}", 1, None))
        blk = [f"v_max_f32 v{vT0}, v{vT0}, v{vT1}",
               f"v_mov_b32 v{vT1}, v{vT0}",
               "s_nop 1",
               f"v_permlane32_swap_b32 v{vT0}, v{vT1}",
               f"v_max_f32 v{vT0}, v{vT0}, v{vT1}",
               f"v_sub_f32 v{vT1}, v{vT0}, v{vM}",
               f"v_cmp_lt_f32 vcc, s{sThr}, v{vT1}",
               "s_nop 4",
               f"s_cbranch_vccnz L_resc{u}",
               f"L_back{u}:"]
        W.append(("\n".join(blk), 8, None))
        RESC.append(u)
        for m in range(4):
            base = S + (m >> 1) * 16 + (m & 1) * 8
            seq = []
            for i in range(8):
                seq.append(("f", i))
            order = [("f",0),("f",1),("x",0),("f",2),("x",1),("f",3),("x",2),("f",4),("x",3),("c",0),
                     ("f",5),("x",4),("f",6),("x",5),("c",1),("f",7),("x",6),("x",7),("c",2),("n",0),("c",3)]
            for k, i in order:
                if k == "f":
                    W.append((f"v_fma_f32 v{base+i}, v{base+i}, s{sC}, -v{vMc}", 1, None))
                elif k == "x":
                    W.append((f"v_exp_f32 v{base+i}, v{base+i}", 2, None))
                elif k == "c":
                    W.append((f"v_cvt_pk_bf16_f32 v{P0+m*4+i}, v{base+2*i}, v{base+2*i+1}", 1, ("P", m) if i == 3 else None))
                else:
                    W.append((f"v_add_f32 v{vL}, v{vL}, v{base}", 1, None))
            W.append((f"v_add_f32 v{vL2}, v{vL2}, v{base+1}", 1, None))
            for i in range(2, 8, 2):
                W.append((f"v_add_f32 v{vL}, v{vL}, v{base+i}", 1, None))
                W.append((f"v_add_f32 v{vL2}, v{vL2}, v{base+i+1}", 1, None))
    n = len(mf)
    total = sum(c for _, c, _ in W)
    issued_ops = []
    def issue_load(j):
        f = F0 + (j % NF) * 4
        for ld in mf[j][0]:
            e(ld(f))
            issued_ops.append(j)
    for j in range(min(NF, n)):
        issue_load(j)
    wi = 0
    done_cost = 0
    pdone = set()
    def emit_work_until(cost_target=None, need=None):
        nonlocal wi, done_cost
        while wi < len(W) and ((cost_target is not None and done_cost < cost_target) or (need is not None and need not in pdone)):
            t, c, tag = W[wi]
            for line in t.split("\n"):
                if line.endswith(":"):
                    L.append(line)
                else:
                    e(line)
            done_cost += c
            wi += 1
            if tag:
                pdone.add(tag[1])
                if need is not None and tag[1] == need:
                    e("s_nop 1")
    for j in range(n):
        m = mf[j][2]
        if m is not None and m not in pdone:
            emit_work_until(need=m)
        younger = sum(1 for x in issued_ops if x > j)
        e(f"s_waitcnt lgkmcnt({min(15, younger)})")
        e(mf[j][1](F0 + (j % NF) * 4))
        if j + NF < n:
            issue_load(j + NF)
        lead = 1.25 if (do_qk and do_sm) else 1.0
        emit_work_until(cost_target=min(total, math.ceil(total * lead * (j + 1) / n)))
    emit_work_until(cost_target=total + 1)


RESC = []
def rescale_blocks():
    for u in RESC:
        lab(f"L_resc{u}")
        e("s_nop 15")
        e(f"v_max_f32 v{vT0}, v{vT0}, v{vM}")
        e(f"v_sub_f32 v{vT1}, v{vM}, v{vT0}")
        e(f"v_mul_f32 v{vT1}, s{sC}, v{vT1}")
        e(f"v_exp_f32 v{vA}, v{vT1}")
        e(f"v_mul_f32 v{vMc}, s{sC}, v{vT0}")
        e(f"v_mov_b32 v{vM}, v{vT0}")
        e(f"v_mul_f32 v{vL}, v{vL}, v{vA}")
        e(f"v_mul_f32 v{vL2}, v{vL2}, v{vA}")
        for i in range(64):
            e(f"v_mul_f32 v{O0+i}, v{O0+i}, v{vA}")
        e("s_nop 1")
        e(f"s_branch L_back{u}")


def iteration(wait_vm, dma, do_qk, Snext, do_sm, Scur):
    if wait_vm is not None:
        e(f"s_waitcnt vmcnt({wait_vm})")
        e("s_barrier")
    if dma:
        dma_issue()
    stream(do_qk, Snext, do_sm, Scur)
    if do_qk:
        adv(sKbuf)
    if do_sm:
        adv(sVbuf)


def main():
    hdr = open(REF + ".ref").read().split("; @launch")[0]
    L.append(hdr.rstrip("\n"))
    L.append(f"; @launch grid=(256,1,1) block=(512,1,1) lds={NSLOT*TILE}")
    L.append('.amdgcn_target "amdgcn-amd-amdhsa--gfx950"')
    L.append(".text")
    L.append(f".globl {KNAME}")
    L.append(".p2align 8")
    L.append(f".type {KNAME},@function")
    lab(KNAME)
    e("s_cmp_ge_u32 s2, 256")
    e("s_cbranch_scc1 L_end")
    e("s_load_dwordx4 s[32:35], s[0:1], 0")
    e("s_load_dwordx4 s[36:39], s[0:1], 16")
    e(f"v_lshrrev_b32 v{vT0}, 6, v0")
    e("s_nop 0")
    e(f"v_readfirstlane_b32 s{sW}, v{vT0}")
    e("v_and_b32 v0, 63, v0")
    e(f"s_mul_i32 s{sTmp}, s2, 61440")
    e("s_lshl_b32 s31, s2, 18")
    e("s_waitcnt lgkmcnt(0)")
    for (srd, src, off) in ((sQ, 32, sTmp), (sK, 34, 31), (sV, 36, 31), (sO, 38, sTmp)):
        e(f"s_add_u32 s{srd}, s{src}, s{off}")
        e(f"s_addc_u32 s{srd+1}, s{src+1}, 0")
        e(f"s_mov_b32 s{srd+2}, {61440 if off == sTmp else 262144}")
        e(f"s_mov_b32 s{srd+3}, 0x00020000")
    e(f"s_mov_b32 s{sC}, 0x{f2b(C_SCALE):08x}")
    e(f"s_mov_b32 s{sThr}, 0x{f2b(THR_RAW):08x}")
    vT3 = vA
    e(f"v_and_b32 v{vT0}, 31, v0")
    e(f"v_lshrrev_b32 v{vT1}, 5, v0")
    e(f"s_lshl_b32 s{sTmp}, s{sW}, 13")
    e(f"v_lshlrev_b32 v{vT2}, 8, v{vT0}")
    e(f"v_add_u32 v{vT2}, s{sTmp}, v{vT2}")
    e(f"v_lshl_add_u32 v{vT3}, v{vT1}, 4, v{vT2}")
    e(f"v_lshl_add_u32 v{vOff}, v{vT1}, 3, v{vT2}")
    for kk in range(8):
        e(f"buffer_load_dwordx4 {vr(Q0+kk*4,4)}, v{vT3}, s[{sQ}:{sQ+3}], 0 offen offset:{kk*32}")
    e(f"v_and_b32 v{vT2}, 15, v{vT0}")
    e(f"v_xor_b32 v{vT2}, v{vT1}, v{vT2}")
    e(f"v_lshlrev_b32 v{vT2}, 4, v{vT2}")
    e(f"v_lshl_add_u32 v{vKb}, v{vT0}, 8, v{vT2}")
    e(f"v_and_b32 v{vT0}, 15, v0")
    e(f"v_lshrrev_b32 v{vT2}, 2, v{vT0}")
    e(f"v_and_b32 v{vT0}, 3, v{vT0}")
    e(f"v_lshlrev_b32 v{vT0}, 3, v{vT0}")
    e(f"v_lshl_add_u32 v{vT0}, v{vT2}, 6, v{vT0}")
    e(f"v_lshl_add_u32 v{vT0}, v{vT2}, 8, v{vT0}")
    e(f"v_lshl_add_u32 v{vT0}, v{vT1}, 10, v{vT0}")
    e(f"v_bfe_u32 v{vT2}, v0, 4, 1")
    e(f"v_lshl_add_u32 v{vVb}, v{vT2}, 5, v{vT0}")
    e(f"v_lshrrev_b32 v{vT0}, 4, v0")
    e(f"v_and_b32 v{vT1}, 15, v0")
    e(f"s_lshl_b32 s{sTmp}, s{sW}, 3")
    e(f"v_add_u32 v{vT2}, s{sTmp}, v{vT0}")
    e(f"v_and_b32 v{vT3}, 15, v{vT2}")
    e(f"v_xor_b32 v{vT3}, v{vT3}, v{vT1}")
    e(f"v_lshlrev_b32 v{vT3}, 4, v{vT3}")
    e(f"v_lshl_add_u32 v{vKd0}, v{vT2}, 8, v{vT3}")
    e(f"v_add_u32 v{vT3}, 4, v{vT2}")
    e(f"v_and_b32 v{vT3}, 15, v{vT3}")
    e(f"v_xor_b32 v{vT3}, v{vT3}, v{vT1}")
    e(f"v_lshlrev_b32 v{vT3}, 4, v{vT3}")
    e(f"v_lshl_add_u32 v{vKd1}, v{vT2}, 8, v{vT3}")
    e(f"v_lshlrev_b32 v{vT3}, 2, v{vT0}")
    e(f"v_xor_b32 v{vT3}, v{vT3}, v{vT1}")
    e(f"v_lshlrev_b32 v{vT3}, 4, v{vT3}")
    e(f"v_lshl_add_u32 v{vVd}, v{vT2}, 8, v{vT3}")
    e(f"s_lshl_b32 s{sKw}, s{sW}, 11")
    e(f"s_add_u32 s{sVw}, s{sKw}, 16384")
    for s in (sGoff, sDbuf, sKbuf, sVbuf):
        e(f"s_mov_b32 s{s}, 0")
    dma_issue(); dma_issue(); dma_issue()
    e(f"v_mov_b32 v{vM}, 0xff800000")
    e(f"v_mov_b32 v{vMc}, 0")
    e(f"v_mov_b32 v{vL}, 0")
    e(f"v_mov_b32 v{vL2}, 0")
    for i in range(64):
        e(f"v_mov_b32 v{O0+i}, 0")
    iteration(8, False, True, SA, False, None)
    e("s_nop 15")
    e(f"s_mov_b32 s{sT}, 0")
    lab("L_loop")
    iteration(4, True, True, SB, True, SA)
    iteration(4, True, True, SA, True, SB)
    e(f"s_add_u32 s{sT}, s{sT}, 2")
    e(f"s_cmp_lt_u32 s{sT}, 12")
    e("s_cbranch_scc1 L_loop")
    iteration(4, True, True, SB, True, SA)
    iteration(4, False, True, SA, True, SB)
    iteration(0, False, True, SB, True, SA)
    iteration(None, False, False, None, True, SB)
    e(f"v_add_f32 v{vL}, v{vL}, v{vL2}")
    e(f"v_mov_b32 v{vT0}, v{vL}")
    e("s_nop 1")
    e(f"v_permlane32_swap_b32 v{vL}, v{vT0}")
    e(f"v_add_f32 v{vL}, v{vL}, v{vT0}")
    e(f"v_rcp_f32 v{vL}, v{vL}")
    e("s_nop 15")
    e("s_nop 7")
    for i in range(64):
        e(f"v_mul_f32 v{O0+i}, v{O0+i}, v{vL}")
    for b in range(4):
        for rq in range(4):
            o = O0 + b * 16 + rq * 4
            t = SA + (b * 4 + rq) * 2
            e(f"v_cvt_pk_bf16_f32 v{t}, v{o}, v{o+1}")
            e(f"v_cvt_pk_bf16_f32 v{t+1}, v{o+2}, v{o+3}")
    for b in range(4):
        for rq in range(4):
            t = SA + (b * 4 + rq) * 2
            e(f"buffer_store_dwordx2 {vr(t,2)}, v{vOff}, s[{sO}:{sO+3}], 0 offen offset:{b*64+rq*16}")
    lab("L_end")
    L.append("s_endpgm")
    rescale_blocks()
    L.append('.section .rodata,"a"')
    L.append(".p2align 6")
    L.append(f".amdhsa_kernel {KNAME}")
    L.append(f"  .amdhsa_next_free_vgpr {NVGPR}")
    L.append("  .amdhsa_next_free_sgpr 48")
    L.append(f"  .amdhsa_accum_offset {(NVGPR+3)//4*4}")
    L.append("  .amdhsa_group_segment_fixed_size 0")
    L.append("  .amdhsa_kernarg_size 48")
    L.append("  .amdhsa_user_sgpr_count 2")
    L.append("  .amdhsa_user_sgpr_kernarg_segment_ptr 1")
    L.append("  .amdhsa_system_sgpr_workgroup_id_x 1")
    L.append(".end_amdhsa_kernel")
    open(OUT, "w").write("\n".join(L) + "\n")

main()
```

```python
import math, os, struct, sys

KNAME = "standalone__gqa_softmax__near_ridge_kernel"
REF = "standalone__gqa_softmax__near_ridge.s"
OUT = sys.argv[1] if len(sys.argv) > 1 else REF
MODE = os.environ.get("MODE", "")
POL = os.environ.get("POL", "nt")
POL = " " + POL if POL else ""

L = []
def e(s): L.append("    " + s)
def lab(s): L.append(s + ":")

vM, vL, vL2, vA, vT0, vT1, vT2 = 1, 2, 3, 4, 5, 6, 7
Q0 = 8
O0 = 40
SA = 104
SB = 136
P0 = 168
F0 = 184
NF = 12
vKd0, vKd1, vVd, vKb, vVb, vOff, vMc = 232, 233, 234, 235, 236, 237, 238
KA0 = 239
VA0 = 247
NVGPR = 251

sQ, sK, sV, sO = 4, 8, 12, 16
sT, sGoff, sKbuf, sVbuf, sDbuf, sC, sW, sTmp, sKw, sVw, sThr = 20, 21, 22, 23, 24, 25, 26, 27, 28, 29, 30
NT, NSLOT, TILE = 16, 4, 32768
C_SCALE = math.log2(math.e) / math.sqrt(128.0)
f2b = lambda x: struct.unpack("<I", struct.pack("<f", x))[0]
THR_RAW = 8.0 / C_SCALE
uid = [0]

def vr(b, n): return f"v[{b}:{b+n-1}]"

def adv(s):
    e(f"s_add_u32 s{s}, s{s}, {TILE}")
    e(f"s_cmp_ge_u32 s{s}, {NSLOT*TILE}")
    e(f"s_cselect_b32 s{s}, 0, s{s}")

def dma_issue():
    if MODE == "nomem":
        return
    e(f"s_add_u32 m0, s{sDbuf}, s{sKw}")
    e("s_nop 0")
    e(f"buffer_load_dwordx4 v{vKd0}, s[{sK}:{sK+3}], s{sGoff} offen{POL} lds")
    e(f"buffer_load_dwordx4 v{vKd1}, s[{sK}:{sK+3}], s{sGoff} offen offset:1024{POL} lds")
    e(f"s_add_u32 m0, s{sDbuf}, s{sVw}")
    e("s_nop 0")
    e(f"buffer_load_dwordx4 v{vVd}, s[{sV}:{sV+3}], s{sGoff} offen{POL} lds")
    e(f"buffer_load_dwordx4 v{vVd}, s[{sV}:{sV+3}], s{sGoff} offen offset:1024{POL} lds")
    e(f"s_add_u32 s{sGoff}, s{sGoff}, 16384")
    adv(sDbuf)


def stream(do_qk, Snext, do_sm, Scur):
    mf = []
    if do_qk:
        e(f"v_add_u32 v{KA0}, s{sKbuf}, v{vKb}")
        for kk in range(1, 8):
            e(f"v_xor_b32 v{KA0+kk}, {kk*32}, v{KA0}")
        for kk in range(8):
            for kb in range(2):
                loads = [lambda f, kb=kb, kk=kk: f"ds_read_b128 {vr(f,4)}, v{KA0+kk} offset:{kb*8192}"]
                c = "0" if kk == 0 else vr(Snext + kb * 16, 16)
                mm = lambda f, kb=kb, kk=kk, c=c: f"v_mfma_f32_32x32x16_bf16 {vr(Snext+kb*16,16)}, {vr(f,4)}, {vr(Q0+kk*4,4)}, {c}"
                mf.append((loads, mm, None))
    if do_sm:
        e(f"v_add_u32 v{VA0}, s{sVbuf}, v{vVb}")
        for d in range(1, 4):
            e(f"v_xor_b32 v{VA0+d}, {d*64}, v{VA0}")
        for m in range(4):
            for d in range(4):
                loads = [lambda f, m=m, d=d, jj=jj: f"ds_read_b64_tr_b16 {vr(f+2*jj,2)}, v{VA0+d} offset:{16384+(16*m+8*jj)*256}" for jj in range(2)]
                mm = lambda f, m=m, d=d: f"v_mfma_f32_32x32x16_bf16 {vr(O0+d*16,16)}, {vr(f,4)}, {vr(P0+m*4,4)}, {vr(O0+d*16,16)}"
                mf.append((loads, mm, m))
    W = []
    if do_sm:
        u = uid[0]; uid[0] += 1
        S = Scur
        W.append((f"v_max3_f32 v{vT0}, v{S}, v{S+1}, v{S+2}", 1, None))
        W.append((f"v_max3_f32 v{vT1}, v{S+3}, v{S+4}, v{S+5}", 1, None))
        for i in range(6, 30, 4):
            W.append((f"v_max3_f32 v{vT0}, v{S+i}, v{S+i+1}, v{vT0}", 1, None))
            W.append((f"v_max3_f32 v{vT1}, v{S+i+2}, v{S+i+3}, v{vT1}", 1, None))
        W.append((f"v_max3_f32 v{vT0}, v{S+30}, v{S+31}, v{vT0}", 1, None))
        blk = [f"v_max_f32 v{vT0}, v{vT0}, v{vT1}",
               f"v_mov_b32 v{vT1}, v{vT0}",
               "s_nop 1",
               f"v_permlane32_swap_b32 v{vT0}, v{vT1}",
               f"v_max_f32 v{vT0}, v{vT0}, v{vT1}",
               f"v_sub_f32 v{vT1}, v{vT0}, v{vM}",
               f"v_cmp_lt_f32 vcc, s{sThr}, v{vT1}",
               "s_nop 4",
               f"s_cbranch_vccnz L_resc{u}",
               f"L_back{u}:"]
        W.append(("\n".join(blk), 8, None))
        RESC.append(u)
        for m in range(4):
            base = S + (m >> 1) * 16 + (m & 1) * 8
            seq = []
            for i in range(8):
                seq.append(("f", i))
            order = [("f",0),("f",1),("x",0),("f",2),("x",1),("f",3),("x",2),("f",4),("x",3),("c",0),
                     ("f",5),("x",4),("f",6),("x",5),("c",1),("f",7),("x",6),("x",7),("c",2),("n",0),("c",3)]
            for k, i in order:
                if k == "f":
                    W.append((f"v_fma_f32 v{base+i}, v{base+i}, s{sC}, -v{vMc}", 1, None))
                elif k == "x":
                    W.append((f"v_exp_f32 v{base+i}, v{base+i}", 2, None))
                elif k == "c":
                    W.append((f"v_cvt_pk_bf16_f32 v{P0+m*4+i}, v{base+2*i}, v{base+2*i+1}", 1, ("P", m) if i == 3 else None))
                else:
                    W.append((f"v_add_f32 v{vL}, v{vL}, v{base}", 1, None))
            W.append((f"v_add_f32 v{vL2}, v{vL2}, v{base+1}", 1, None))
            for i in range(2, 8, 2):
                W.append((f"v_add_f32 v{vL}, v{vL}, v{base+i}", 1, None))
                W.append((f"v_add_f32 v{vL2}, v{vL2}, v{base+i+1}", 1, None))
    n = len(mf)
    total = sum(c for _, c, _ in W)
    issued_ops = []
    def issue_load(j):
        f = F0 + (j % NF) * 4
        for ld in mf[j][0]:
            e(ld(f))
            issued_ops.append(j)
    for j in range(min(NF, n)):
        issue_load(j)
    wi = 0
    done_cost = 0
    pdone = set()
    def emit_work_until(cost_target=None, need=None):
        nonlocal wi, done_cost
        while wi < len(W) and ((cost_target is not None and done_cost < cost_target) or (need is not None and need not in pdone)):
            t, c, tag = W[wi]
            for line in t.split("\n"):
                if line.endswith(":"):
                    L.append(line)
                else:
                    e(line)
            done_cost += c
            wi += 1
            if tag:
                pdone.add(tag[1])
                if need is not None and tag[1] == need:
                    e("s_nop 1")
    for j in range(n):
        m = mf[j][2]
        if m is not None and m not in pdone:
            emit_work_until(need=m)
        younger = sum(1 for x in issued_ops if x > j)
        e(f"s_waitcnt lgkmcnt({min(15, younger)})")
        e(mf[j][1](F0 + (j % NF) * 4))
        if j + NF < n:
            issue_load(j + NF)
        lead = 1.25 if (do_qk and do_sm) else 1.0
        emit_work_until(cost_target=min(total, math.ceil(total * lead * (j + 1) / n)))
    emit_work_until(cost_target=total + 1)


RESC = []
def rescale_blocks():
    for u in RESC:
        lab(f"L_resc{u}")
        e("s_nop 15")
        e(f"v_max_f32 v{vT0}, v{vT0}, v{vM}")
        e(f"v_sub_f32 v{vT1}, v{vM}, v{vT0}")
        e(f"v_mul_f32 v{vT1}, s{sC}, v{vT1}")
        e(f"v_exp_f32 v{vA}, v{vT1}")
        e(f"v_mul_f32 v{vMc}, s{sC}, v{vT0}")
        e(f"v_mov_b32 v{vM}, v{vT0}")
        e(f"v_mul_f32 v{vL}, v{vL}, v{vA}")
        e(f"v_mul_f32 v{vL2}, v{vL2}, v{vA}")
        for i in range(64):
            e(f"v_mul_f32 v{O0+i}, v{O0+i}, v{vA}")
        e("s_nop 1")
        e(f"s_branch L_back{u}")


def iteration(wait_vm, dma, do_qk, Snext, do_sm, Scur):
    if wait_vm is not None:
        e(f"s_waitcnt vmcnt({wait_vm})")
        e("s_barrier")
    if dma:
        dma_issue()
    stream(do_qk, Snext, do_sm, Scur)
    if do_qk:
        adv(sKbuf)
    if do_sm:
        adv(sVbuf)


def main():
    hdr = open(REF + ".ref").read().split("; @launch")[0]
    L.append(hdr.rstrip("\n"))
    L.append(f"; @launch grid=(256,1,1) block=(512,1,1) lds={NSLOT*TILE}")
    L.append('.amdgcn_target "amdgcn-amd-amdhsa--gfx950"')
    L.append(".text")
    L.append(f".globl {KNAME}")
    L.append(".p2align 8")
    L.append(f".type {KNAME},@function")
    lab(KNAME)
    e("s_cmp_ge_u32 s2, 256")
    e("s_cbranch_scc1 L_end")
    e("s_load_dwordx4 s[32:35], s[0:1], 0")
    e("s_load_dwordx4 s[36:39], s[0:1], 16")
    e(f"v_lshrrev_b32 v{vT0}, 6, v0")
    e("s_nop 0")
    e(f"v_readfirstlane_b32 s{sW}, v{vT0}")
    e("v_and_b32 v0, 63, v0")
    e(f"s_mul_i32 s{sTmp}, s2, 61440")
    e("s_lshl_b32 s31, s2, 18")
    e("s_waitcnt lgkmcnt(0)")
    for (srd, src, off) in ((sQ, 32, sTmp), (sK, 34, 31), (sV, 36, 31), (sO, 38, sTmp)):
        e(f"s_add_u32 s{srd}, s{src}, s{off}")
        e(f"s_addc_u32 s{srd+1}, s{src+1}, 0")
        e(f"s_mov_b32 s{srd+2}, {61440 if off == sTmp else 262144}")
        e(f"s_mov_b32 s{srd+3}, 0x00020000")
    e(f"s_mov_b32 s{sC}, 0x{f2b(C_SCALE):08x}")
    e(f"s_mov_b32 s{sThr}, 0x{f2b(THR_RAW):08x}")
    vT3 = vA
    e(f"v_and_b32 v{vT0}, 31, v0")
    e(f"v_lshrrev_b32 v{vT1}, 5, v0")
    e(f"s_lshl_b32 s{sTmp}, s{sW}, 13")
    e(f"v_lshlrev_b32 v{vT2}, 8, v{vT0}")
    e(f"v_add_u32 v{vT2}, s{sTmp}, v{vT2}")
    e(f"v_lshl_add_u32 v{vT3}, v{vT1}, 4, v{vT2}")
    e(f"v_lshl_add_u32 v{vOff}, v{vT1}, 3, v{vT2}")
    for kk in range(8):
        e(f"buffer_load_dwordx4 {vr(Q0+kk*4,4)}, v{vT3}, s[{sQ}:{sQ+3}], 0 offen offset:{kk*32}")
    e(f"v_and_b32 v{vT2}, 15, v{vT0}")
    e(f"v_xor_b32 v{vT2}, v{vT1}, v{vT2}")
    e(f"v_lshlrev_b32 v{vT2}, 4, v{vT2}")
    e(f"v_lshl_add_u32 v{vKb}, v{vT0}, 8, v{vT2}")
    e(f"v_and_b32 v{vT0}, 15, v0")
    e(f"v_lshrrev_b32 v{vT2}, 2, v{vT0}")
    e(f"v_and_b32 v{vT0}, 3, v{vT0}")
    e(f"v_lshlrev_b32 v{vT0}, 3, v{vT0}")
    e(f"v_lshl_add_u32 v{vT0}, v{vT2}, 6, v{vT0}")
    e(f"v_lshl_add_u32 v{vT0}, v{vT2}, 8, v{vT0}")
    e(f"v_lshl_add_u32 v{vT0}, v{vT1}, 10, v{vT0}")
    e(f"v_bfe_u32 v{vT2}, v0, 4, 1")
    e(f"v_lshl_add_u32 v{vVb}, v{vT2}, 5, v{vT0}")
    e(f"v_lshrrev_b32 v{vT0}, 4, v0")
    e(f"v_and_b32 v{vT1}, 15, v0")
    e(f"s_lshl_b32 s{sTmp}, s{sW}, 3")
    e(f"v_add_u32 v{vT2}, s{sTmp}, v{vT0}")
    e(f"v_and_b32 v{vT3}, 15, v{vT2}")
    e(f"v_xor_b32 v{vT3}, v{vT3}, v{vT1}")
    e(f"v_lshlrev_b32 v{vT3}, 4, v{vT3}")
    e(f"v_lshl_add_u32 v{vKd0}, v{vT2}, 8, v{vT3}")
    e(f"v_add_u32 v{vT3}, 4, v{vT2}")
    e(f"v_and_b32 v{vT3}, 15, v{vT3}")
    e(f"v_xor_b32 v{vT3}, v{vT3}, v{vT1}")
    e(f"v_lshlrev_b32 v{vT3}, 4, v{vT3}")
    e(f"v_lshl_add_u32 v{vKd1}, v{vT2}, 8, v{vT3}")
    e(f"v_lshlrev_b32 v{vT3}, 2, v{vT0}")
    e(f"v_xor_b32 v{vT3}, v{vT3}, v{vT1}")
    e(f"v_lshlrev_b32 v{vT3}, 4, v{vT3}")
    e(f"v_lshl_add_u32 v{vVd}, v{vT2}, 8, v{vT3}")
    e(f"s_lshl_b32 s{sKw}, s{sW}, 11")
    e(f"s_add_u32 s{sVw}, s{sKw}, 16384")
    for s in (sGoff, sDbuf, sKbuf, sVbuf):
        e(f"s_mov_b32 s{s}, 0")
    dma_issue(); dma_issue(); dma_issue()
    e(f"v_mov_b32 v{vM}, 0xff800000")
    e(f"v_mov_b32 v{vMc}, 0")
    e(f"v_mov_b32 v{vL}, 0")
    e(f"v_mov_b32 v{vL2}, 0")
    for i in range(64):
        e(f"v_mov_b32 v{O0+i}, 0")
    iteration(8, False, True, SA, False, None)
    e("s_nop 15")
    e(f"s_mov_b32 s{sT}, 0")
    lab("L_loop")
    iteration(4, True, True, SB, True, SA)
    iteration(4, True, True, SA, True, SB)
    e(f"s_add_u32 s{sT}, s{sT}, 2")
    e(f"s_cmp_lt_u32 s{sT}, 12")
    e("s_cbranch_scc1 L_loop")
    iteration(4, True, True, SB, True, SA)
    iteration(4, False, True, SA, True, SB)
    iteration(0, False, True, SB, True, SA)
    iteration(None, False, False, None, True, SB)
    e(f"v_add_f32 v{vL}, v{vL}, v{vL2}")
    e(f"v_mov_b32 v{vT0}, v{vL}")
    e("s_nop 1")
    e(f"v_permlane32_swap_b32 v{vL}, v{vT0}")
    e(f"v_add_f32 v{vL}, v{vL}, v{vT0}")
    e(f"v_rcp_f32 v{vL}, v{vL}")
    e("s_nop 15")
    e("s_nop 7")
    for i in range(64):
        e(f"v_mul_f32 v{O0+i}, v{O0+i}, v{vL}")
    for b in range(4):
        for rq in range(4):
            o = O0 + b * 16 + rq * 4
            t = SA + (b * 4 + rq) * 2
            e(f"v_cvt_pk_bf16_f32 v{t}, v{o}, v{o+1}")
            e(f"v_cvt_pk_bf16_f32 v{t+1}, v{o+2}, v{o+3}")
    for b in range(4):
        for rq in range(4):
            t = SA + (b * 4 + rq) * 2
            e(f"buffer_store_dwordx2 {vr(t,2)}, v{vOff}, s[{sO}:{sO+3}], 0 offen offset:{b*64+rq*16}")
    lab("L_end")
    L.append("s_endpgm")
    rescale_blocks()
    L.append('.section .rodata,"a"')
    L.append(".p2align 6")
    L.append(f".amdhsa_kernel {KNAME}")
    L.append(f"  .amdhsa_next_free_vgpr {NVGPR}")
    L.append("  .amdhsa_next_free_sgpr 48")
    L.append(f"  .amdhsa_accum_offset {(NVGPR+3)//4*4}")
    L.append("  .amdhsa_group_segment_fixed_size 0")
    L.append("  .amdhsa_kernarg_size 48")
    L.append("  .amdhsa_user_sgpr_count 2")
    L.append("  .amdhsa_user_sgpr_kernarg_segment_ptr 1")
    L.append("  .amdhsa_system_sgpr_workgroup_id_x 1")
    L.append(".end_amdhsa_kernel")
    open(OUT, "w").write("\n".join(L) + "\n")

main()
```

```python
import math, os, struct, sys

KNAME = "standalone__gqa_softmax__near_ridge_kernel"
REF = "standalone__gqa_softmax__near_ridge.s"
OUT = sys.argv[1] if len(sys.argv) > 1 else REF
MODE = os.environ.get("MODE", "")
POL = os.environ.get("POL", "nt")
POL = " " + POL if POL else ""

L = []
def e(s): L.append("    " + s)
def lab(s): L.append(s + ":")

vM, vL, vL2, vA, vT0, vT1, vT2 = 1, 2, 3, 4, 5, 6, 7
Q0 = 8
O0 = 40
SA = 104
SB = 136
P0 = 168
F0 = 184
NF = 12
vKd0, vKd1, vVd, vKb, vVb, vOff, vMc = 232, 233, 234, 235, 236, 237, 238
KA0 = 239
VA0 = 247
NVGPR = 251

sQ, sK, sV, sO = 4, 8, 12, 16
sT, sGoff, sKbuf, sVbuf, sDbuf, sC, sW, sTmp, sKw, sVw, sThr = 20, 21, 22, 23, 24, 25, 26, 27, 28, 29, 30
NT, NSLOT, TILE = 16, 4, 32768
C_SCALE = math.log2(math.e) / math.sqrt(128.0)
f2b = lambda x: struct.unpack("<I", struct.pack("<f", x))[0]
THR_RAW = 8.0 / C_SCALE
uid = [0]

def vr(b, n): return f"v[{b}:{b+n-1}]"

def adv(s):
    e(f"s_add_u32 s{s}, s{s}, {TILE}")
    e(f"s_cmp_ge_u32 s{s}, {NSLOT*TILE}")
    e(f"s_cselect_b32 s{s}, 0, s{s}")

def dma_issue():
    if "nomem" in MODE:
        return
    e(f"s_add_u32 m0, s{sDbuf}, s{sKw}")
    e("s_nop 0")
    e(f"buffer_load_dwordx4 v{vKd0}, s[{sK}:{sK+3}], s{sGoff} offen{POL} lds")
    e(f"buffer_load_dwordx4 v{vKd1}, s[{sK}:{sK+3}], s{sGoff} offen offset:1024{POL} lds")
    e(f"s_add_u32 m0, s{sDbuf}, s{sVw}")
    e("s_nop 0")
    e(f"buffer_load_dwordx4 v{vVd}, s[{sV}:{sV+3}], s{sGoff} offen{POL} lds")
    e(f"buffer_load_dwordx4 v{vVd}, s[{sV}:{sV+3}], s{sGoff} offen offset:1024{POL} lds")
    e(f"s_add_u32 s{sGoff}, s{sGoff}, 16384")
    adv(sDbuf)


def stamp(real=False):
    if "stamp" not in MODE:
        return
    e("s_memrealtime s[40:41]" if real else "s_memtime s[40:41]")
    e("s_waitcnt lgkmcnt(0)")
    e(f"v_mov_b32 v{vT1}, s40")
    e(f"v_mov_b32 v{vT2}, s44")
    e(f"buffer_store_dword v{vT1}, v{vT2}, s[48:51], 0 offen")
    e("s_add_u32 s44, s44, 4")
    e("s_nop 1")


def stream(do_qk, Snext, do_sm, Scur):
    mf = []
    if do_qk:
        e(f"v_add_u32 v{KA0}, s{sKbuf}, v{vKb}")
        for kk in range(1, 8):
            e(f"v_xor_b32 v{KA0+kk}, {kk*32}, v{KA0}")
        for kk in range(8):
            for kb in range(2):
                loads = [lambda f, kb=kb, kk=kk: f"ds_read_b128 {vr(f,4)}, v{KA0+kk} offset:{kb*8192}"]
                c = "0" if kk == 0 else vr(Snext + kb * 16, 16)
                mm = lambda f, kb=kb, kk=kk, c=c: f"v_mfma_f32_32x32x16_bf16 {vr(Snext+kb*16,16)}, {vr(f,4)}, {vr(Q0+kk*4,4)}, {c}"
                mf.append((loads, mm, None))
    if do_sm:
        e(f"v_add_u32 v{VA0}, s{sVbuf}, v{vVb}")
        for d in range(1, 4):
            e(f"v_xor_b32 v{VA0+d}, {d*64}, v{VA0}")
        for m in range(4):
            for d in range(4):
                loads = [lambda f, m=m, d=d, jj=jj: f"ds_read_b64_tr_b16 {vr(f+2*jj,2)}, v{VA0+d} offset:{16384+(16*m+8*jj)*256}" for jj in range(2)]
                mm = lambda f, m=m, d=d: f"v_mfma_f32_32x32x16_bf16 {vr(O0+d*16,16)}, {vr(f,4)}, {vr(P0+m*4,4)}, {vr(O0+d*16,16)}"
                mf.append((loads, mm, m))
    W = []
    if do_sm:
        u = uid[0]; uid[0] += 1
        S = Scur
        W.append((f"v_max3_f32 v{vT0}, v{S}, v{S+1}, v{S+2}", 1, None))
        W.append((f"v_max3_f32 v{vT1}, v{S+3}, v{S+4}, v{S+5}", 1, None))
        for i in range(6, 30, 4):
            W.append((f"v_max3_f32 v{vT0}, v{S+i}, v{S+i+1}, v{vT0}", 1, None))
            W.append((f"v_max3_f32 v{vT1}, v{S+i+2}, v{S+i+3}, v{vT1}", 1, None))
        W.append((f"v_max3_f32 v{vT0}, v{S+30}, v{S+31}, v{vT0}", 1, None))
        blk = [f"v_max_f32 v{vT0}, v{vT0}, v{vT1}",
               f"v_mov_b32 v{vT1}, v{vT0}",
               "s_nop 1",
               f"v_permlane32_swap_b32 v{vT0}, v{vT1}",
               f"v_max_f32 v{vT0}, v{vT0}, v{vT1}",
               f"v_sub_f32 v{vT1}, v{vT0}, v{vM}",
               f"v_cmp_lt_f32 vcc, s{sThr}, v{vT1}",
               "s_nop 4",
               f"s_cbranch_vccnz L_resc{u}",
               f"L_back{u}:"]
        W.append(("\n".join(blk), 8, None))
        RESC.append(u)
        for m in range(4):
            base = S + (m >> 1) * 16 + (m & 1) * 8
            seq = []
            for i in range(8):
                seq.append(("f", i))
            order = [("f",0),("f",1),("x",0),("f",2),("x",1),("f",3),("x",2),("f",4),("x",3),("c",0),
                     ("f",5),("x",4),("f",6),("x",5),("c",1),("f",7),("x",6),("x",7),("c",2),("n",0),("c",3)]
            for k, i in order:
                if k == "f":
                    W.append((f"v_fma_f32 v{base+i}, v{base+i}, s{sC}, -v{vMc}", 1, None))
                elif k == "x":
                    W.append((f"v_exp_f32 v{base+i}, v{base+i}", 2, None))
                elif k == "c":
                    W.append((f"v_cvt_pk_bf16_f32 v{P0+m*4+i}, v{base+2*i}, v{base+2*i+1}", 1, ("P", m) if i == 3 else None))
                else:
                    W.append((f"v_add_f32 v{vL}, v{vL}, v{base}", 1, None))
            W.append((f"v_add_f32 v{vL2}, v{vL2}, v{base+1}", 1, None))
            for i in range(2, 8, 2):
                W.append((f"v_add_f32 v{vL}, v{vL}, v{base+i}", 1, None))
                W.append((f"v_add_f32 v{vL2}, v{vL2}, v{base+i+1}", 1, None))
    n = len(mf)
    total = sum(c for _, c, _ in W)
    issued_ops = []
    def issue_load(j):
        f = F0 + (j % NF) * 4
        for ld in mf[j][0]:
            e(ld(f))
            issued_ops.append(j)
    for j in range(min(NF, n)):
        issue_load(j)
    wi = 0
    done_cost = 0
    pdone = set()
    def emit_work_until(cost_target=None, need=None):
        nonlocal wi, done_cost
        while wi < len(W) and ((cost_target is not None and done_cost < cost_target) or (need is not None and need not in pdone)):
            t, c, tag = W[wi]
            for line in t.split("\n"):
                if line.endswith(":"):
                    L.append(line)
                else:
                    e(line)
            done_cost += c
            wi += 1
            if tag:
                pdone.add(tag[1])
                if need is not None and tag[1] == need:
                    e("s_nop 1")
    for j in range(n):
        m = mf[j][2]
        if m is not None and m not in pdone:
            emit_work_until(need=m)
        younger = sum(1 for x in issued_ops if x > j)
        e(f"s_waitcnt lgkmcnt({min(15, younger)})")
        e(mf[j][1](F0 + (j % NF) * 4))
        if j + NF < n:
            issue_load(j + NF)
        lead = 1.25 if (do_qk and do_sm) else 1.0
        emit_work_until(cost_target=min(total, math.ceil(total * lead * (j + 1) / n)))
    emit_work_until(cost_target=total + 1)


RESC = []
def rescale_blocks():
    for u in RESC:
        lab(f"L_resc{u}")
        e("s_nop 15")
        e(f"v_max_f32 v{vT0}, v{vT0}, v{vM}")
        e(f"v_sub_f32 v{vT1}, v{vM}, v{vT0}")
        e(f"v_mul_f32 v{vT1}, s{sC}, v{vT1}")
        e(f"v_exp_f32 v{vA}, v{vT1}")
        e(f"v_mul_f32 v{vMc}, s{sC}, v{vT0}")
        e(f"v_mov_b32 v{vM}, v{vT0}")
        e(f"v_mul_f32 v{vL}, v{vL}, v{vA}")
        e(f"v_mul_f32 v{vL2}, v{vL2}, v{vA}")
        for i in range(64):
            e(f"v_mul_f32 v{O0+i}, v{O0+i}, v{vA}")
        e("s_nop 1")
        e(f"s_branch L_back{u}")


def iteration(wait_vm, dma, do_qk, Snext, do_sm, Scur):
    if wait_vm is not None:
        e(f"s_waitcnt vmcnt({wait_vm})")
        e("s_barrier")
    stamp()
    if dma:
        dma_issue()
    stream(do_qk, Snext, do_sm, Scur)
    if do_qk:
        adv(sKbuf)
    if do_sm:
        adv(sVbuf)


def main():
    hdr = open(REF + ".ref").read().split("; @launch")[0]
    L.append(hdr.rstrip("\n"))
    L.append(f"; @launch grid=(256,1,1) block=(512,1,1) lds={NSLOT*TILE}")
    L.append('.amdgcn_target "amdgcn-amd-amdhsa--gfx950"')
    L.append(".text")
    L.append(f".globl {KNAME}")
    L.append(".p2align 8")
    L.append(f".type {KNAME},@function")
    lab(KNAME)
    e("s_cmp_ge_u32 s2, 256")
    e("s_cbranch_scc1 L_end")
    e("s_load_dwordx4 s[32:35], s[0:1], 0")
    e("s_load_dwordx4 s[36:39], s[0:1], 16")
    e(f"v_lshrrev_b32 v{vT0}, 6, v0")
    e("s_nop 0")
    e(f"v_readfirstlane_b32 s{sW}, v{vT0}")
    e("v_and_b32 v0, 63, v0")
    e(f"s_mul_i32 s{sTmp}, s2, 61440")
    e("s_lshl_b32 s31, s2, 18")
    e("s_waitcnt lgkmcnt(0)")
    for (srd, src, off) in ((sQ, 32, sTmp), (sK, 34, 31), (sV, 36, 31), (sO, 38, sTmp)):
        e(f"s_add_u32 s{srd}, s{src}, s{off}")
        e(f"s_addc_u32 s{srd+1}, s{src+1}, 0")
        e(f"s_mov_b32 s{srd+2}, {61440 if off == sTmp else 262144}")
        e(f"s_mov_b32 s{srd+3}, 0x00020000")
    e(f"s_mov_b32 s{sC}, 0x{f2b(C_SCALE):08x}")
    e(f"s_mov_b32 s{sThr}, 0x{f2b(THR_RAW):08x}")
    vT3 = vA
    if "stamp" in MODE:
        e("s_load_dwordx2 s[48:49], s[0:1], 40")
        e("s_waitcnt lgkmcnt(0)")
        e("s_mov_b32 s50, 0x100000")
        e("s_mov_b32 s51, 0x00020000")
        e("s_lshl_b32 s44, s2, 3")
        e(f"s_add_u32 s44, s44, s{sW}")
        e("s_lshl_b32 s44, s44, 8")
        stamp(True); stamp()
    e(f"v_and_b32 v{vT0}, 31, v0")
    e(f"v_lshrrev_b32 v{vT1}, 5, v0")
    e(f"s_lshl_b32 s{sTmp}, s{sW}, 13")
    e(f"v_lshlrev_b32 v{vT2}, 8, v{vT0}")
    e(f"v_add_u32 v{vT2}, s{sTmp}, v{vT2}")
    e(f"v_lshl_add_u32 v{vT3}, v{vT1}, 4, v{vT2}")
    e(f"v_lshl_add_u32 v{vOff}, v{vT1}, 4, v{vT2}")
    for kk in range(8):
        e(f"buffer_load_dwordx4 {vr(Q0+kk*4,4)}, v{vT3}, s[{sQ}:{sQ+3}], 0 offen offset:{kk*32}")
    e(f"v_and_b32 v{vT2}, 15, v{vT0}")
    e(f"v_xor_b32 v{vT2}, v{vT1}, v{vT2}")
    e(f"v_lshlrev_b32 v{vT2}, 4, v{vT2}")
    e(f"v_lshl_add_u32 v{vKb}, v{vT0}, 8, v{vT2}")
    e(f"v_and_b32 v{vT0}, 15, v0")
    e(f"v_lshrrev_b32 v{vT2}, 2, v{vT0}")
    e(f"v_and_b32 v{vT0}, 3, v{vT0}")
    e(f"v_lshlrev_b32 v{vT0}, 3, v{vT0}")
    e(f"v_lshl_add_u32 v{vT0}, v{vT2}, 6, v{vT0}")
    e(f"v_lshl_add_u32 v{vT0}, v{vT2}, 8, v{vT0}")
    e(f"v_lshl_add_u32 v{vT0}, v{vT1}, 10, v{vT0}")
    e(f"v_bfe_u32 v{vT2}, v0, 4, 1")
    e(f"v_lshl_add_u32 v{vVb}, v{vT2}, 5, v{vT0}")
    e(f"v_lshrrev_b32 v{vT0}, 4, v0")
    e(f"v_and_b32 v{vT1}, 15, v0")
    e(f"s_lshl_b32 s{sTmp}, s{sW}, 3")
    e(f"v_add_u32 v{vT2}, s{sTmp}, v{vT0}")
    e(f"v_and_b32 v{vT3}, 15, v{vT2}")
    e(f"v_xor_b32 v{vT3}, v{vT3}, v{vT1}")
    e(f"v_lshlrev_b32 v{vT3}, 4, v{vT3}")
    e(f"v_lshl_add_u32 v{vKd0}, v{vT2}, 8, v{vT3}")
    e(f"v_add_u32 v{vT3}, 4, v{vT2}")
    e(f"v_and_b32 v{vT3}, 15, v{vT3}")
    e(f"v_xor_b32 v{vT3}, v{vT3}, v{vT1}")
    e(f"v_lshlrev_b32 v{vT3}, 4, v{vT3}")
    e(f"v_lshl_add_u32 v{vKd1}, v{vT2}, 8, v{vT3}")
    e(f"v_lshlrev_b32 v{vT3}, 2, v{vT0}")
    e(f"v_xor_b32 v{vT3}, v{vT3}, v{vT1}")
    e(f"v_lshlrev_b32 v{vT3}, 4, v{vT3}")
    e(f"v_lshl_add_u32 v{vVd}, v{vT2}, 8, v{vT3}")
    e(f"s_lshl_b32 s{sKw}, s{sW}, 11")
    e(f"s_add_u32 s{sVw}, s{sKw}, 16384")
    for s in (sGoff, sDbuf, sKbuf, sVbuf):
        e(f"s_mov_b32 s{s}, 0")
    dma_issue(); dma_issue(); dma_issue()
    e(f"v_mov_b32 v{vM}, 0xff800000")
    e(f"v_mov_b32 v{vMc}, 0")
    e(f"v_mov_b32 v{vL}, 0")
    e(f"v_mov_b32 v{vL2}, 0")
    for i in range(64):
        e(f"v_mov_b32 v{O0+i}, 0")
    iteration(8, False, True, SA, False, None)
    e("s_nop 15")
    e(f"s_mov_b32 s{sT}, 0")
    lab("L_loop")
    iteration(4, True, True, SB, True, SA)
    iteration(4, True, True, SA, True, SB)
    e(f"s_add_u32 s{sT}, s{sT}, 2")
    e(f"s_cmp_lt_u32 s{sT}, 12")
    e("s_cbranch_scc1 L_loop")
    iteration(4, True, True, SB, True, SA)
    iteration(4, False, True, SA, True, SB)
    iteration(0, False, True, SB, True, SA)
    iteration(None, False, False, None, True, SB)
    stamp()
    e(f"v_add_f32 v{vL}, v{vL}, v{vL2}")
    e(f"v_mov_b32 v{vT0}, v{vL}")
    e("s_nop 1")
    e(f"v_permlane32_swap_b32 v{vL}, v{vT0}")
    e(f"v_add_f32 v{vL}, v{vL}, v{vT0}")
    e(f"v_rcp_f32 v{vL}, v{vL}")
    e("s_nop 15")
    e("s_nop 7")
    for i in range(64):
        e(f"v_mul_f32 v{O0+i}, v{O0+i}, v{vL}")
    for b in range(4):
        for rq in range(4):
            o = O0 + b * 16 + rq * 4
            t = SA + (b * 4 + rq) * 2
            e(f"v_cvt_pk_bf16_f32 v{t}, v{o}, v{o+1}")
            e(f"v_cvt_pk_bf16_f32 v{t+1}, v{o+2}, v{o+3}")
    e("s_nop 1")
    for b in range(4):
        for rq in (0, 2):
            t = SA + (b * 4 + rq) * 2
            e(f"v_permlane32_swap_b32 v{t}, v{t+2}")
            e(f"v_permlane32_swap_b32 v{t+1}, v{t+3}")
    for b in range(4):
        for rq in (0, 2):
            t = SA + (b * 4 + rq) * 2
            e(f"buffer_store_dwordx4 {vr(t,4)}, v{vOff}, s[{sO}:{sO+3}], 0 offen offset:{b*64+rq*16}")
    stamp()
    e("s_waitcnt vmcnt(0)")
    stamp(); stamp(True)
    lab("L_end")
    L.append("s_endpgm")
    rescale_blocks()
    L.append('.section .rodata,"a"')
    L.append(".p2align 6")
    L.append(f".amdhsa_kernel {KNAME}")
    L.append(f"  .amdhsa_next_free_vgpr {NVGPR}")
    L.append("  .amdhsa_next_free_sgpr 56")
    L.append(f"  .amdhsa_accum_offset {(NVGPR+3)//4*4}")
    L.append("  .amdhsa_group_segment_fixed_size 0")
    L.append("  .amdhsa_kernarg_size 48")
    L.append("  .amdhsa_user_sgpr_count 2")
    L.append("  .amdhsa_user_sgpr_kernarg_segment_ptr 1")
    L.append("  .amdhsa_system_sgpr_workgroup_id_x 1")
    L.append(".end_amdhsa_kernel")
    open(OUT, "w").write("\n".join(L) + "\n")

main()
```

```python
import math, os, struct, sys

KNAME = "standalone__gqa_softmax__near_ridge_kernel"
REF = "standalone__gqa_softmax__near_ridge.s"
OUT = sys.argv[1] if len(sys.argv) > 1 else REF
MODE = os.environ.get("MODE", "")
POL = os.environ.get("POL", "nt")
POL = " " + POL if POL else ""

L = []
def e(s): L.append("    " + s)
def lab(s): L.append(s + ":")

vM, vL, vL2, vA, vT0, vT1, vT2 = 1, 2, 3, 4, 5, 6, 7
Q0 = 8
O0 = 40
SA = 104
SB = 136
P0 = 168
F0 = 184
NF = 12
vKd0, vKd1, vVd, vKb, vVb, vOff, vMc = 232, 233, 234, 235, 236, 237, 238
KA0 = 239
VA0 = 247
NVGPR = 251

sQ, sK, sV, sO = 4, 8, 12, 16
sT, sGoff, sKbuf, sVbuf, sDbuf, sC, sW, sTmp, sKw, sVw, sThr = 20, 21, 22, 23, 24, 25, 26, 27, 28, 29, 30
NT, NSLOT, TILE = 16, 4, 32768
C_SCALE = math.log2(math.e) / math.sqrt(128.0)
f2b = lambda x: struct.unpack("<I", struct.pack("<f", x))[0]
THR_RAW = 8.0 / C_SCALE
uid = [0]

def vr(b, n): return f"v[{b}:{b+n-1}]"

def adv(s):
    e(f"s_add_u32 s{s}, s{s}, {TILE}")
    e(f"s_cmp_ge_u32 s{s}, {NSLOT*TILE}")
    e(f"s_cselect_b32 s{s}, 0, s{s}")

def dma_issue():
    if "nomem" in MODE:
        return
    e(f"s_add_u32 m0, s{sDbuf}, s{sKw}")
    e("s_nop 0")
    e(f"buffer_load_dwordx4 v{vKd0}, s[{sK}:{sK+3}], s{sGoff} offen{POL} lds")
    e(f"buffer_load_dwordx4 v{vKd1}, s[{sK}:{sK+3}], s{sGoff} offen offset:1024{POL} lds")
    e(f"s_add_u32 m0, s{sDbuf}, s{sVw}")
    e("s_nop 0")
    e(f"buffer_load_dwordx4 v{vVd}, s[{sV}:{sV+3}], s{sGoff} offen{POL} lds")
    e(f"buffer_load_dwordx4 v{vVd}, s[{sV}:{sV+3}], s{sGoff} offen offset:1024{POL} lds")
    e(f"s_add_u32 s{sGoff}, s{sGoff}, 16384")
    adv(sDbuf)


def stamp(real=False):
    if "stamp" not in MODE:
        return
    e("s_memrealtime s[40:41]" if real else "s_memtime s[40:41]")
    e("s_waitcnt lgkmcnt(0)")
    e(f"v_mov_b32 v{vT1}, s40")
    e(f"v_mov_b32 v{vT2}, s44")
    e(f"buffer_store_dword v{vT1}, v{vT2}, s[48:51], 0 offen")
    e("s_add_u32 s44, s44, 4")
    e("s_nop 1")


def stream(do_qk, Snext, do_sm, Scur):
    mf = []
    if do_qk:
        e(f"v_add_u32 v{KA0}, s{sKbuf}, v{vKb}")
        for kk in range(1, 8):
            e(f"v_xor_b32 v{KA0+kk}, {kk*32}, v{KA0}")
        for kk in range(8):
            for kb in range(2):
                loads = [lambda f, kb=kb, kk=kk: f"ds_read_b128 {vr(f,4)}, v{KA0+kk} offset:{kb*8192}"]
                c = "0" if kk == 0 else vr(Snext + kb * 16, 16)
                mm = lambda f, kb=kb, kk=kk, c=c: f"v_mfma_f32_32x32x16_bf16 {vr(Snext+kb*16,16)}, {vr(f,4)}, {vr(Q0+kk*4,4)}, {c}"
                mf.append((loads, mm, None))
    if do_sm:
        e(f"v_add_u32 v{VA0}, s{sVbuf}, v{vVb}")
        for d in range(1, 4):
            e(f"v_xor_b32 v{VA0+d}, {d*64}, v{VA0}")
        for m in range(4):
            for d in range(4):
                loads = [lambda f, m=m, d=d, jj=jj: f"ds_read_b64_tr_b16 {vr(f+2*jj,2)}, v{VA0+d} offset:{16384+(16*m+8*jj)*256}" for jj in range(2)]
                mm = lambda f, m=m, d=d: f"v_mfma_f32_32x32x16_bf16 {vr(O0+d*16,16)}, {vr(f,4)}, {vr(P0+m*4,4)}, {vr(O0+d*16,16)}"
                mf.append((loads, mm, m))
    W = []
    if do_sm:
        u = uid[0]; uid[0] += 1
        S = Scur
        W.append((f"v_max3_f32 v{vT0}, v{S}, v{S+1}, v{S+2}", 1, None))
        W.append((f"v_max3_f32 v{vT1}, v{S+3}, v{S+4}, v{S+5}", 1, None))
        for i in range(6, 30, 4):
            W.append((f"v_max3_f32 v{vT0}, v{S+i}, v{S+i+1}, v{vT0}", 1, None))
            W.append((f"v_max3_f32 v{vT1}, v{S+i+2}, v{S+i+3}, v{vT1}", 1, None))
        W.append((f"v_max3_f32 v{vT0}, v{S+30}, v{S+31}, v{vT0}", 1, None))
        blk = [f"v_max_f32 v{vT0}, v{vT0}, v{vT1}",
               f"v_mov_b32 v{vT1}, v{vT0}",
               "s_nop 1",
               f"v_permlane32_swap_b32 v{vT0}, v{vT1}",
               f"v_max_f32 v{vT0}, v{vT0}, v{vT1}",
               f"v_sub_f32 v{vT1}, v{vT0}, v{vM}",
               f"v_cmp_lt_f32 vcc, s{sThr}, v{vT1}",
               "s_nop 4",
               f"s_cbranch_vccnz L_resc{u}",
               f"L_back{u}:"]
        W.append(("\n".join(blk), 8, None))
        RESC.append(u)
        for m in range(4):
            base = S + (m >> 1) * 16 + (m & 1) * 8
            seq = []
            for i in range(8):
                seq.append(("f", i))
            order = [("f",0),("f",1),("x",0),("f",2),("x",1),("f",3),("x",2),("f",4),("x",3),("c",0),
                     ("f",5),("x",4),("f",6),("x",5),("c",1),("f",7),("x",6),("x",7),("c",2),("n",0),("c",3)]
            for k, i in order:
                if k == "f":
                    W.append((f"v_fma_f32 v{base+i}, v{base+i}, s{sC}, -v{vMc}", 1, None))
                elif k == "x":
                    W.append((f"v_exp_f32 v{base+i}, v{base+i}", 2, None))
                elif k == "c":
                    W.append((f"v_cvt_pk_bf16_f32 v{P0+m*4+i}, v{base+2*i}, v{base+2*i+1}", 1, ("P", m) if i == 3 else None))
                else:
                    W.append((f"v_add_f32 v{vL}, v{vL}, v{base}", 1, None))
            W.append((f"v_add_f32 v{vL2}, v{vL2}, v{base+1}", 1, None))
            for i in range(2, 8, 2):
                W.append((f"v_add_f32 v{vL}, v{vL}, v{base+i}", 1, None))
                W.append((f"v_add_f32 v{vL2}, v{vL2}, v{base+i+1}", 1, None))
    n = len(mf)
    total = sum(c for _, c, _ in W)
    issued_ops = []
    def issue_load(j):
        f = F0 + (j % NF) * 4
        for ld in mf[j][0]:
            e(ld(f))
            issued_ops.append(j)
    for j in range(min(NF, n)):
        issue_load(j)
    wi = 0
    done_cost = 0
    pdone = set()
    def emit_work_until(cost_target=None, need=None):
        nonlocal wi, done_cost
        while wi < len(W) and ((cost_target is not None and done_cost < cost_target) or (need is not None and need not in pdone)):
            t, c, tag = W[wi]
            for line in t.split("\n"):
                if line.endswith(":"):
                    L.append(line)
                else:
                    e(line)
            done_cost += c
            wi += 1
            if tag:
                pdone.add(tag[1])
                if need is not None and tag[1] == need:
                    e("s_nop 1")
    for j in range(n):
        m = mf[j][2]
        if m is not None and m not in pdone:
            emit_work_until(need=m)
        younger = sum(1 for x in issued_ops if x > j)
        e(f"s_waitcnt lgkmcnt({min(15, younger)})")
        e(mf[j][1](F0 + (j % NF) * 4))
        if j + NF < n:
            issue_load(j + NF)
        lead = 1.25 if (do_qk and do_sm) else 1.0
        emit_work_until(cost_target=min(total, math.ceil(total * lead * (j + 1) / n)))
    emit_work_until(cost_target=total + 1)


RESC = []
def rescale_blocks():
    for u in RESC:
        lab(f"L_resc{u}")
        e("s_nop 15")
        e(f"v_max_f32 v{vT0}, v{vT0}, v{vM}")
        e(f"v_sub_f32 v{vT1}, v{vM}, v{vT0}")
        e(f"v_mul_f32 v{vT1}, s{sC}, v{vT1}")
        e(f"v_exp_f32 v{vA}, v{vT1}")
        e(f"v_mul_f32 v{vMc}, s{sC}, v{vT0}")
        e(f"v_mov_b32 v{vM}, v{vT0}")
        e(f"v_mul_f32 v{vL}, v{vL}, v{vA}")
        e(f"v_mul_f32 v{vL2}, v{vL2}, v{vA}")
        for i in range(64):
            e(f"v_mul_f32 v{O0+i}, v{O0+i}, v{vA}")
        e("s_nop 1")
        e(f"s_branch L_back{u}")


def iteration(wait_vm, dma, do_qk, Snext, do_sm, Scur):
    if wait_vm is not None:
        e(f"s_waitcnt vmcnt({wait_vm})")
        e("s_barrier")
    stamp()
    if dma:
        dma_issue()
    stream(do_qk, Snext, do_sm, Scur)
    if do_qk:
        adv(sKbuf)
    if do_sm:
        adv(sVbuf)


def main():
    hdr = open(REF + ".ref").read().split("; @launch")[0]
    L.append(hdr.rstrip("\n"))
    L.append(f"; @launch grid=(256,1,1) block=(512,1,1) lds={NSLOT*TILE}")
    L.append('.amdgcn_target "amdgcn-amd-amdhsa--gfx950"')
    L.append(".text")
    L.append(f".globl {KNAME}")
    L.append(".p2align 8")
    L.append(f".type {KNAME},@function")
    lab(KNAME)
    e("s_cmp_ge_u32 s2, 256")
    e("s_cbranch_scc1 L_end")
    e("s_load_dwordx4 s[32:35], s[0:1], 0")
    e("s_load_dwordx4 s[36:39], s[0:1], 16")
    e(f"v_lshrrev_b32 v{vT0}, 6, v0")
    e("s_nop 0")
    e(f"v_readfirstlane_b32 s{sW}, v{vT0}")
    e("v_and_b32 v0, 63, v0")
    e(f"s_mul_i32 s{sTmp}, s2, 61440")
    e("s_lshl_b32 s31, s2, 18")
    e("s_waitcnt lgkmcnt(0)")
    for (srd, src, off) in ((sQ, 32, sTmp), (sK, 34, 31), (sV, 36, 31), (sO, 38, sTmp)):
        e(f"s_add_u32 s{srd}, s{src}, s{off}")
        e(f"s_addc_u32 s{srd+1}, s{src+1}, 0")
        e(f"s_mov_b32 s{srd+2}, {61440 if off == sTmp else 262144}")
        e(f"s_mov_b32 s{srd+3}, 0x00020000")
    e(f"s_mov_b32 s{sC}, 0x{f2b(C_SCALE):08x}")
    e(f"s_mov_b32 s{sThr}, 0x{f2b(THR_RAW):08x}")
    vT3 = vA
    if "stamp" in MODE:
        e("s_load_dwordx2 s[48:49], s[0:1], 40")
        e("s_waitcnt lgkmcnt(0)")
        e("s_mov_b32 s50, 0x100000")
        e("s_mov_b32 s51, 0x00020000")
        e("s_lshl_b32 s44, s2, 3")
        e(f"s_add_u32 s44, s44, s{sW}")
        e("s_lshl_b32 s44, s44, 8")
        stamp(True); stamp()
    e(f"v_and_b32 v{vT0}, 31, v0")
    e(f"v_lshrrev_b32 v{vT1}, 5, v0")
    e(f"s_lshl_b32 s{sTmp}, s{sW}, 13")
    e(f"v_lshlrev_b32 v{vT2}, 8, v{vT0}")
    e(f"v_add_u32 v{vT2}, s{sTmp}, v{vT2}")
    e(f"v_lshl_add_u32 v{vT3}, v{vT1}, 4, v{vT2}")
    e(f"v_lshl_add_u32 v{vOff}, v{vT1}, 4, v{vT2}")
    for kk in range(8):
        e(f"buffer_load_dwordx4 {vr(Q0+kk*4,4)}, v{vT3}, s[{sQ}:{sQ+3}], 0 offen offset:{kk*32}")
    e(f"v_and_b32 v{vT2}, 15, v{vT0}")
    e(f"v_xor_b32 v{vT2}, v{vT1}, v{vT2}")
    e(f"v_lshlrev_b32 v{vT2}, 4, v{vT2}")
    e(f"v_lshl_add_u32 v{vKb}, v{vT0}, 8, v{vT2}")
    e(f"v_and_b32 v{vT0}, 15, v0")
    e(f"v_lshrrev_b32 v{vT2}, 2, v{vT0}")
    e(f"v_and_b32 v{vT0}, 3, v{vT0}")
    e(f"v_lshlrev_b32 v{vT0}, 3, v{vT0}")
    e(f"v_lshl_add_u32 v{vT0}, v{vT2}, 6, v{vT0}")
    e(f"v_lshl_add_u32 v{vT0}, v{vT2}, 8, v{vT0}")
    e(f"v_lshl_add_u32 v{vT0}, v{vT1}, 10, v{vT0}")
    e(f"v_bfe_u32 v{vT2}, v0, 4, 1")
    e(f"v_lshl_add_u32 v{vVb}, v{vT2}, 5, v{vT0}")
    e(f"v_lshrrev_b32 v{vT0}, 4, v0")
    e(f"v_and_b32 v{vT1}, 15, v0")
    e(f"s_lshl_b32 s{sTmp}, s{sW}, 3")
    e(f"v_add_u32 v{vT2}, s{sTmp}, v{vT0}")
    e(f"v_and_b32 v{vT3}, 15, v{vT2}")
    e(f"v_xor_b32 v{vT3}, v{vT3}, v{vT1}")
    e(f"v_lshlrev_b32 v{vT3}, 4, v{vT3}")
    e(f"v_lshl_add_u32 v{vKd0}, v{vT2}, 8, v{vT3}")
    e(f"v_add_u32 v{vT3}, 4, v{vT2}")
    e(f"v_and_b32 v{vT3}, 15, v{vT3}")
    e(f"v_xor_b32 v{vT3}, v{vT3}, v{vT1}")
    e(f"v_lshlrev_b32 v{vT3}, 4, v{vT3}")
    e(f"v_lshl_add_u32 v{vKd1}, v{vT2}, 8, v{vT3}")
    e(f"v_lshlrev_b32 v{vT3}, 2, v{vT0}")
    e(f"v_xor_b32 v{vT3}, v{vT3}, v{vT1}")
    e(f"v_lshlrev_b32 v{vT3}, 4, v{vT3}")
    e(f"v_lshl_add_u32 v{vVd}, v{vT2}, 8, v{vT3}")
    e(f"s_lshl_b32 s{sKw}, s{sW}, 11")
    e(f"s_add_u32 s{sVw}, s{sKw}, 16384")
    for s in (sGoff, sDbuf, sKbuf, sVbuf):
        e(f"s_mov_b32 s{s}, 0")
    dma_issue(); dma_issue(); dma_issue()
    e(f"v_mov_b32 v{vM}, 0xff800000")
    e(f"v_mov_b32 v{vMc}, 0")
    e(f"v_mov_b32 v{vL}, 0")
    e(f"v_mov_b32 v{vL2}, 0")
    for i in range(64):
        e(f"v_mov_b32 v{O0+i}, 0")
    iteration(8, False, True, SA, False, None)
    e("s_nop 15")
    e(f"s_mov_b32 s{sT}, 0")
    if os.environ.get("PRIO"):
        e(f"s_cmp_lt_u32 s{sW}, 4")
        e("s_cbranch_scc1 L_noprio")
        e("s_setprio 1")
        lab("L_noprio")
    lab("L_loop")
    iteration(4, True, True, SB, True, SA)
    iteration(4, True, True, SA, True, SB)
    e(f"s_add_u32 s{sT}, s{sT}, 2")
    e(f"s_cmp_lt_u32 s{sT}, 12")
    e("s_cbranch_scc1 L_loop")
    iteration(4, True, True, SB, True, SA)
    iteration(4, False, True, SA, True, SB)
    iteration(0, False, True, SB, True, SA)
    iteration(None, False, False, None, True, SB)
    stamp()
    e(f"v_add_f32 v{vL}, v{vL}, v{vL2}")
    e(f"v_mov_b32 v{vT0}, v{vL}")
    e("s_nop 1")
    e(f"v_permlane32_swap_b32 v{vL}, v{vT0}")
    e(f"v_add_f32 v{vL}, v{vL}, v{vT0}")
    e(f"v_rcp_f32 v{vL}, v{vL}")
    e("s_nop 15")
    e("s_nop 7")
    for i in range(64):
        e(f"v_mul_f32 v{O0+i}, v{O0+i}, v{vL}")
    for b in range(4):
        for rq in range(4):
            o = O0 + b * 16 + rq * 4
            t = SA + (b * 4 + rq) * 2
            e(f"v_cvt_pk_bf16_f32 v{t}, v{o}, v{o+1}")
            e(f"v_cvt_pk_bf16_f32 v{t+1}, v{o+2}, v{o+3}")
    e("s_nop 1")
    for b in range(4):
        for rq in (0, 2):
            t = SA + (b * 4 + rq) * 2
            e(f"v_permlane32_swap_b32 v{t}, v{t+2}")
            e(f"v_permlane32_swap_b32 v{t+1}, v{t+3}")
    for b in range(4):
        for rq in (0, 2):
            t = SA + (b * 4 + rq) * 2
            e(f"buffer_store_dwordx4 {vr(t,4)}, v{vOff}, s[{sO}:{sO+3}], 0 offen offset:{b*64+rq*16}")
    stamp()
    e("s_waitcnt vmcnt(0)")
    stamp(); stamp(True)
    lab("L_end")
    L.append("s_endpgm")
    rescale_blocks()
    L.append('.section .rodata,"a"')
    L.append(".p2align 6")
    L.append(f".amdhsa_kernel {KNAME}")
    L.append(f"  .amdhsa_next_free_vgpr {NVGPR}")
    L.append("  .amdhsa_next_free_sgpr 56")
    L.append(f"  .amdhsa_accum_offset {(NVGPR+3)//4*4}")
    L.append("  .amdhsa_group_segment_fixed_size 0")
    L.append("  .amdhsa_kernarg_size 48")
    L.append("  .amdhsa_user_sgpr_count 2")
    L.append("  .amdhsa_user_sgpr_kernarg_segment_ptr 1")
    L.append("  .amdhsa_system_sgpr_workgroup_id_x 1")
    L.append(".end_amdhsa_kernel")
    open(OUT, "w").write("\n".join(L) + "\n")

main()
```
